```python
import torch

def _softmax(x, axis=-1):
    return torch.softmax(x, dim=axis)

def _gelu(x):
    return torch.nn.functional.gelu(x, approximate='tanh')

def _silu(x):
    return torch.nn.functional.silu(x)

def _sigmoid(x):
    return torch.sigmoid(x)

def _layernorm(x, axis=-1, eps=1e-05):
    m = x.mean(dim=axis, keepdim=True)
    v = x.var(dim=axis, keepdim=True, unbiased=False)
    return (x - m) / torch.sqrt(v + eps)

def _scatter_add(tgt, idx, src, axis=0):
    return tgt.clone().index_add_(axis, idx, src)

def _segment_sum(src, seg, n):
    out = torch.zeros((n,) + src.shape[1:], dtype=src.dtype)
    return out.index_add_(0, seg, src)

def _pad(x, pw):
    flat = tuple((v for pair in reversed(pw) for v in pair))
    return torch.nn.functional.pad(x, flat)
kernel_name = 'gated_mix__memory_aug_recurrent_mem_tr__mha_block__prompt'

def setup_inputs():

    _w = lambda a: (lambda t: t.to(torch.bfloat16) if t.is_floating_point() else t)(torch.as_tensor(a))

    def _A_setup():
        B, S, Dm = (1, 2048, 640)
        H, Dh = (32, 192)
        M, seg = (8, 32)
        seg = min(seg, S)
        S = S // seg * seg
        return {'x': _w((lambda *s: torch.randn(*s, dtype=torch.bfloat16) * 0.05)(B, S, Dm)), 'mem0': _w((lambda *s: torch.randn(*s, dtype=torch.bfloat16) * 0.8)(B, M, Dm)), 'Wq': _w((lambda *s: torch.randn(*s, dtype=torch.bfloat16) * 1.6)(Dm, H, Dh) * Dm ** (-0.5)), 'Wk': _w((lambda *s: torch.randn(*s, dtype=torch.bfloat16) * 1.6)(Dm, H, Dh) * Dm ** (-0.5)), 'Wv': _w((lambda *s: torch.randn(*s, dtype=torch.bfloat16) * 0.8)(Dm, H, Dh) * Dm ** (-0.5)), 'Wo': _w((lambda *s: torch.randn(*s, dtype=torch.bfloat16) * 0.8)(H, Dh, Dm) * (H * Dh) ** (-0.5)), 'seg_len': seg}
    _A_in = _A_setup()

    def _B_setup():
        B, S, D, H = (1, 2048, 640, 32)
        return {'x': _w((lambda *s: torch.randn(*s, dtype=torch.bfloat16) * 0.05)(B, S, D)), 'wqkv': _w((lambda *s: torch.randn(*s, dtype=torch.bfloat16) * 0.8)(D, 3 * D)), 'wo': _w((lambda *s: torch.randn(*s, dtype=torch.bfloat16) * 0.05)(D, D))}
    _B_in = _B_setup()
    return {'A_x': _A_in['x'], 'A_mem0': _A_in['mem0'], 'A_Wq': _A_in['Wq'], 'A_Wk': _A_in['Wk'], 'A_Wv': _A_in['Wv'], 'A_Wo': _A_in['Wo'], 'A_seg_len': _A_in['seg_len'], 'B_x': _B_in['x'], 'B_wqkv': _B_in['wqkv'], 'B_wo': _B_in['wo'], 'gate_w': _w((lambda *s: torch.randn(*s, dtype=torch.bfloat16) * 0.05)(640) * 16.0)}

def reference(A_x, A_mem0, A_Wq, A_Wk, A_Wv, A_Wo, A_seg_len, B_x, B_wqkv, B_wo, gate_w):

    def _A_ref(x, mem0, Wq, Wk, Wv, Wo, seg_len):
        B, S, Dm = x.shape
        H, Dh = (Wq.shape[1], Wq.shape[2])
        M = mem0.shape[1]
        scale = Dh ** (-0.5)
        n_seg = S // seg_len
        L = M + seg_len
        idx = torch.arange(L)
        mask = (idx[:, None] < M) | (idx[:, None] >= idx[None, :])
        mem = mem0
        outs = []
        for s in range(n_seg):
            xs = x[:, s * seg_len:(s + 1) * seg_len, :].clone()
            h = torch.concatenate([mem, xs], axis=1)
            q = torch.einsum('btd,dhe->bhte', h, Wq)
            k = torch.einsum('btd,dhe->bhte', h, Wk)
            v = torch.einsum('btd,dhe->bhte', h, Wv)
            scores = torch.einsum('bhqe,bhke->bhqk', q, k) * scale
            scores = torch.where(mask[None, None], scores, -1000000000.0)
            p = _softmax(scores, axis=-1)
            o = torch.einsum('bhqk,bhke->bhqe', p, v)
            o = torch.einsum('bhte,hed->btd', o, Wo)
            mem = o[:, :M, :].clone()
            outs.append(o[:, M:, :])
        return torch.concatenate(outs, axis=1)

    def _B_ref(x, wqkv, wo):
        B, S, D = x.shape
        H = 32
        Dh = D // H
        qkv = (lambda x, *d: x.permute(*d))((x @ wqkv).reshape(B, S, 3, H, Dh), 2, 0, 3, 1, 4)
        q, k, v = (qkv[0], qkv[1], qkv[2])
        scores = torch.einsum('bhqd,bhkd->bhqk', q, k) * Dh ** (-0.5)
        p = _softmax(scores, axis=-1)
        o = torch.einsum('bhqk,bhkd->bhqd', p, v)
        return (lambda x, *d: x.permute(*d))(o, 0, 2, 1, 3).reshape(B, S, D) @ wo
    x = A_x
    g = _sigmoid((x * gate_w).sum(-1, keepdims=True))
    a = _A_ref(x, A_mem0, A_Wq, A_Wk, A_Wv, A_Wo, A_seg_len)
    b = _B_ref(x, B_wqkv, B_wo)
    return g * a + (1 - g) * b
```

```python
import re

TRANS = ("v_exp_f32", "v_log_f32", "v_rcp_f32", "v_rsq_f32", "v_sqrt_f32", "v_sin_f32", "v_cos_f32", "v_rcp_iflag_f32")

def regs_of(op):
    op = op.strip()
    op = op.lstrip('-')
    m = re.fullmatch(r"abs\((.*)\)", op)
    if m: op = m.group(1)
    m = re.fullmatch(r"\|(.*)\|", op)
    if m: op = m.group(1)
    m = re.fullmatch(r"([vas])(\d+)", op)
    if m: return {(m.group(1), int(m.group(2)))}
    m = re.fullmatch(r"([vas])\[(\d+):(\d+)\]", op)
    if m: return {(m.group(1), i) for i in range(int(m.group(2)), int(m.group(3)) + 1)}
    if op in ("vcc",): return {('s', 'vcc_lo'), ('s', 'vcc_hi')}
    if op in ("vcc_lo", "vcc_hi"): return {('s', op)}
    if op == "exec": return {('s', 'exec_lo'), ('s', 'exec_hi')}
    if op in ("exec_lo", "exec_hi"): return {('s', op)}
    if op == "m0": return {('s', 'm0')}
    return set()

class Ins:
    __slots__ = ("text", "op", "kind", "w", "r", "passes", "A", "B", "C", "D", "dpp", "data", "wide", "states", "lds_dma")
    def __init__(self, text):
        self.text = text
        t = text.split(";")[0].strip()
        self.w = set(); self.r = set(); self.passes = 0; self.kind = "other"; self.dpp = False
        self.A = self.B = self.C = self.D = set(); self.data = set(); self.wide = False; self.states = 1; self.lds_dma = False
        if not t or t.endswith(":") or t.startswith("."):
            self.op = ""; self.kind = "label" if t.endswith(":") else "none"; self.states = 0; return
        parts = t.split(None, 1)
        self.op = op = parts[0]
        rest = parts[1] if len(parts) > 1 else ""
        ops = []; cur = ""; depth = 0
        for ch in rest:
            if ch in "[(": depth += 1
            if ch in "])": depth -= 1
            if ch == "," and depth == 0: ops.append(cur.strip()); cur = ""
            else: cur += ch
        if cur.strip(): ops.append(cur.strip())
        mods = ""
        if ops:
            last = ops[-1].split(None, 1)
            if len(last) > 1 and not last[0].endswith(":"):
                ops[-1] = last[0]; mods = last[1]
        R = [regs_of(o) for o in ops]
        if op == "s_nop":
            self.kind = "nop"; self.states = int(ops[0], 0) + 1; return
        if op.startswith("v_mfma") or op.startswith("v_smfmac"):
            self.kind = "mfma"
            self.passes = 8 if "32x32" in op else 4
            if "16x16x4_f32" in op: self.passes = 8
            self.D = R[0]; self.A = R[1]; self.B = R[2]
            if op.startswith("v_smfmac"):
                self.C = R[0]; self.B = R[2] | R[3]
            else: self.C = R[3]
            self.w = set(self.D); self.r = self.A | self.B | self.C
            return
        if op.startswith("v_"):
            self.kind = "valu"
            self.dpp = ("dpp" in op) or ("quad_perm" in mods) or ("row_" in mods)
            if op.startswith("v_permlane") and "swap" in op:
                self.w = R[0] | R[1]; self.r = R[0] | R[1]; self.kind = "permlane"; return
            if op.startswith("v_cmp"):
                self.w = R[0]; self.r = set().union(*R[1:]); return
            if op.startswith(("v_add_co", "v_sub_co", "v_addc_co", "v_subb_co", "v_mad_u64")):
                self.w = R[0] | R[1]; self.r = set().union(*R[2:]); return
            self.w = R[0]; self.r = set().union(*R[1:]) if len(R) > 1 else set()
            if op.startswith(("v_fmac", "v_pk_fmac", "v_dot2c")) or self.dpp or op.startswith("v_writelane"): self.r |= R[0]
            if op.startswith("v_cndmask") and len(ops) == 3: self.r |= regs_of("vcc")
            return
        if op.startswith("ds_"):
            self.kind = "ds"
            if op.startswith(("ds_read", "ds_bpermute", "ds_permute", "ds_swizzle")):
                self.w = R[0]; self.r = set().union(*R[1:])
            else:
                self.r = set().union(*R)
            return
        if op.startswith(("buffer_", "global_")):
            self.kind = "vmem"
            lds = (" lds" in " " + mods) or "_lds_" in op
            if op in ("buffer_wbl2", "buffer_inv"): return
            if lds:
                self.lds_dma = True; self.r = set().union(*R) | {('s', 'm0')}
            elif "load" in op:
                self.w = R[0]; self.r = set().union(*R[1:])
            elif "atomic" in op:
                self.r = set().union(*R)
                if "sc0" in mods:
                    self.w = R[0]
                    if op.startswith("global_"): self.r = set().union(*R[1:])
            else:
                self.r = set().union(*R)
                self.data = R[0] if op.startswith("buffer_") else R[1]
                self.wide = op.endswith(("x3", "x4"))
            return
        if op.startswith("s_"):
            self.kind = "salu"
            if op.startswith(("s_cmp", "s_cbranch", "s_branch", "s_waitcnt", "s_barrier", "s_endpgm", "s_sleep", "s_setprio", "s_bitcmp")):
                self.r = set().union(*R) if R else set()
            else:
                self.w = R[0] if R else set(); self.r = set().union(*R[1:]) if len(R) > 1 else set()
                if "saveexec" in op: self.w |= regs_of("exec")
            return

def need(p, c):
    n = 0
    vw = {x for x in p.w if x[0] in "va"}
    sw = {x for x in p.w if x[0] == "s"}
    pv = p.kind in ("valu", "permlane")
    cv = c.kind in ("valu", "permlane")
    if pv:
        if c.kind == "mfma" and vw & c.r: n = max(n, 2)
        if c.kind == "permlane" and vw & c.r: n = max(n, 2)
        if c.kind == "valu" and c.dpp and vw & c.r: n = max(n, 2)
        if c.op.startswith(("v_readlane", "v_readfirstlane")) and vw & c.r: n = max(n, 1)
        if p.op in TRANS and cv and c.op not in TRANS and vw & c.r: n = max(n, 1)
        if p.op in TRANS and c.kind in ("vmem", "ds") and vw & c.r: n = max(n, 1)
        if sw:
            if cv and sw & c.r: n = max(n, 4 if c.op.startswith(("v_readlane", "v_writelane")) else 2)
            if c.kind == "vmem" and sw & c.r: n = max(n, 5)
    if p.kind == "mfma":
        far = {4: 8, 8: 12}[p.passes]
        if cv and (p.D & (c.r | c.w)): n = max(n, far)
        if c.kind in ("vmem", "ds") and (p.D & (c.r | c.w)): n = max(n, far)
        if c.kind == "mfma":
            if p.D & (c.A | c.B): n = max(n, far)
            if p.D & c.C:
                if not (p.D == c.C and p.passes == c.passes): n = max(n, far - 2)
            elif p.D & c.D: n = max(n, far)
        if cv and (p.C & c.w): n = max(n, {4: 3, 8: 7}[p.passes])
    if p.kind == "vmem" and p.wide and (p.data & c.w) and c.kind != "vmem":
        n = max(n, 2)
    if p.kind == "salu" and ('s', 'm0') in p.w and c.lds_dma: n = max(n, 1)
    return n

class Asm:
    def __init__(self):
        self.L = []
        self.uid = 0
    def e(self, text):
        for line in text.split("\n"):
            line = line.strip()
            if line: self.L.append(line)
    __call__ = e
    def label(self, base):
        self.uid += 1
        return f"L_{base}_{self.uid}"
    def finish(self, verbose=False):
        ins = [Ins(t) for t in self.L]
        labels = {i.text[:-1]: k for k, i in enumerate(ins) if i.kind == "label"}
        WIN = 14
        total = 0
        labels = {i.text[:-1]: k for k, i in enumerate(ins) if i.kind == "label"}
        k = 0
        while k < len(ins):
            p = ins[k]
            if p.states == 0 or p.kind == "nop" or not (p.w or p.wide or p.kind == "mfma"):
                k += 1; continue
            stack = [(k + 1, 0)]
            seen = set()
            fix = None
            while stack:
                j, d = stack.pop()
                while j < len(ins) and d < WIN:
                    if (j, d) in seen: break
                    seen.add((j, d))
                    c = ins[j]
                    if c.states:
                        n = need(p, c)
                        if n > d:
                            if fix is None or j < fix[0]: fix = (j, n - d)
                            break
                        if c.op == "s_endpgm": break
                        if c.op == "s_branch":
                            tgt = c.text.split()[1]
                            j = labels[tgt]; d += 1; continue
                        if c.op.startswith("s_cbranch"):
                            tgt = c.text.split()[1]
                            stack.append((labels[tgt], d + 1))
                        d += c.states
                    j += 1
            if fix:
                j, n = fix
                if verbose: print(f"hazard: '{p.text}' -> '{ins[j].text}' +{n}")
                ins.insert(j, Ins(f"s_nop {n-1}"))
                total += 1
                for name in labels:
                    if labels[name] >= j: labels[name] += 1
                if j <= k: k += 1
            else:
                k += 1
        self.nfix = total
        return "\n".join(i.text for i in ins) + "\n"
```

```python
from gen_misc import *

def role_T2(a, cfg):
    E_ = Eng; t = E_.V_T
    s_cg, s_tp = 76, 77
    a(f"s_mul_i32 s{s_tp}, s{S_T3}, 6554\ns_lshr_b32 s{s_tp}, s{s_tp}, 16\ns_mul_i32 s{S_T0}, s{s_tp}, 10\ns_sub_u32 s{s_cg}, s{S_T3}, s{S_T0}")
    srd(a, 8, P_WQKV, D*3*D*2); srd(a, 72, P_X, S*D*2)
    cb = 20**-0.5 * math.log2(math.e)
    a(f"s_cmp_lt_u32 s{s_cg}, 5\ns_mov_b32 s{S_T0}, {f32bits(cb)}\ns_cselect_b32 s{E_.S_SC}, s{S_T0}, 1.0\ns_mov_b32 s{E_.S_SC+1}, s{E_.S_SC}")
    a(f"s_mov_b32 s{S_T0}, {KB}\ns_cselect_b32 s78, {QB}, s{S_T0}\ns_cselect_b32 s79, 0, 160")
    lane_rows(a, E_.V_EP, 4, 3840); lane_rows(a, E_.V_EP+3, 3, 3840)
    a(f"s_mul_i32 s{S_T0}, s{S_WAVE}, {8*3840}\ns_lshl_b32 s{E_.S_WA}, s{s_cg}, 8\ns_add_u32 s{E_.S_WA}, s{E_.S_WA}, s{S_T0}")
    a(f"s_lshl_b32 s{E_.S_WB}, s{s_cg}, 7\ns_add_u32 s{E_.S_WB}, s{E_.S_WB}, s{S_T0}\ns_add_u32 s{E_.S_WB}, s{E_.S_WB}, 2560")
    a(f"s_lshl_b32 s{S_T0}, s{S_WAVE}, 6\ns_add_u32 s{S_T0}, s{S_T0}, 81920")
    tr_addr(a, E_.V_EP+1, 8, 3, S_T0)
    a(f"s_lshl_b32 s{S_T0}, s{S_WAVE}, 5\ns_add_u32 s{S_T0}, s{S_T0}, {81920 + 8192}")
    tr_addr(a, E_.V_EP+2, 7, 3, S_T0)
    a(f"v_and_b32 v{t+4}, 15, v{V_LANE}\nv_lshrrev_b32 v{t+5}, 4, v{V_LANE}")
    for tau in range(2):
        a(f"s_lshl_b32 s{S_T0}, s{s_cg}, 5\ns_lshl_b32 s{S_T1}, s{S_WAVE}, 3\ns_add_u32 s{S_T0}, s{S_T0}, s{S_T1}\ns_add_u32 s{S_T0}, s{S_T0}, {4*tau}\ns_sub_u32 s{S_T0}, s{S_T0}, s79")
        a(f"v_add_u32 v{t}, s{S_T0}, v{t+5}\nv_mul_u32_u24 v{t+1}, 13108, v{t}\nv_lshrrev_b32 v{t+1}, 16, v{t+1}\nv_mul_u32_u24 v{t+2}, 5, v{t+1}\nv_sub_u32 v{t}, v{t}, v{t+2}")
        a(f"v_mul_u32_u24 v{t+1}, 81920, v{t+1}\nv_lshl_add_u32 v{t}, v{t}, 8, v{t+1}")
        a(f"v_lshrrev_b32 v{t+1}, 3, v{t+4}\nv_lshlrev_b32 v{t+1}, 4, v{t+1}\nv_and_or_b32 v{t+1}, v{t+4}, 7, v{t+1}\nv_lshl_add_u32 v{t}, v{t+1}, 3, v{t}\nv_add_u32 v{E_.V_EA+tau}, s78, v{t}")
    a(f"s_lshl_b32 s{S_T0}, s{s_cg}, 6\ns_lshl_b32 s{S_T1}, s{S_WAVE}, 4\ns_add_u32 s{S_T0}, s{S_T0}, s{S_T1}\nv_add_u32 v{t}, s{S_T0}, v{t+4}")
    a(f"v_mul_u32_u24 v{t+1}, 3277, v{t}\nv_lshrrev_b32 v{t+1}, 16, v{t+1}\nv_mul_u32_u24 v{t+2}, 20, v{t+1}\nv_sub_u32 v{t}, v{t}, v{t+2}")
    a(f"v_mul_u32_u24 v{t+1}, 81920, v{t+1}\nv_lshl_add_u32 v{t}, v{t}, 4, v{t+1}\nv_mul_u32_u24 v{t+1}, 320, v{t+5}\nv_add_u32 v{t}, v{t}, v{t+1}\nv_add_u32 v{E_.V_EA+2}, {VB}, v{t}")
    a(f"s_mul_i32 s{S_T0}, s{s_tp}, 22\ns_mul_i32 s{E_.S_SOFF}, s{S_T0}, 40960\ns_mul_i32 s{E_.S_ENX}, s{S_T0}, 1280\ns_mov_b32 s{E_.S_EST}, 1280")
    a(f"s_cmp_eq_u32 s{s_tp}, 2\ns_cselect_b32 s{E_.S_NSEG}, 20, 22")
    stream_rowmajor(a, perm=True)
    if cfg.get("t2wait", 1): poll_dbg_ge(a, DBG_WLD, 96, t)
    def reads(u, base):
        r = []; o = base - 81920
        for tau in range(2):
            for m in range(2): r.append(f"ds_read_b64_tr_b16 {wreg2(u*3 + tau, m)}, v{E_.V_EP+1} offset:{o + tau*32 + m*1024}")
        for m in range(2): r.append(f"ds_read_b64_tr_b16 {wreg2(u*3 + 2, m)}, v{E_.V_EP+2} offset:{o + m*512}")
        return r
    def staging(prime):
        stage_weights(a, 20, [(8, E_.V_EP, E_.S_WA, lambda u, k: (32*u + 4*k)*3840, 2, 0), (8, E_.V_EP+3, E_.S_WB, lambda u, k: 32*u*3840, 1, 8192)],
                      reads, 5, lds0=81920, early=prime)
        stamp(a, 1)
    def epi(acc):
        r = []; P = E_.V_EP
        for tau in range(2):
            for tt in range(2):
                d = acc + 4*(2*tau + tt); e = P + 2*(2*tau + tt)
                for i in range(2): r.append(f"v_pk_mul_f32 v[{d+2*i}:{d+2*i+1}], v[{d+2*i}:{d+2*i+1}], s[{E_.S_SC}:{E_.S_SC+1}]")
                r += cvt4(e, d)
                r.append(f"buffer_store_dwordx2 v[{e}:{e+1}], v{E_.V_EA+tau}, s[4:7], s{E_.S_EOFF} offen offset:{64*tt} sc1")
        r += cvt4(P + 8, acc + 16) + cvt4(P + 10, acc + 20)
        r.append(f"buffer_store_dwordx4 v[{P+8}:{P+11}], v{E_.V_EA+2}, s[4:7], s{E_.S_EOFF} offen sc1")
        return r
    engine(a, "t2", 20, 3, "AAB", 1, 72, lambda p: 40960, 'perm', epi, 5, staging=staging)
    dbg_add(a, DBG_T2, t)
    stamp(a, 2)

def role_T3(a, cfg):
    QA, QBr, MF, G1 = (8, 16), (12, 20), (24, 25), (26, 27)
    OA = (32, 48); SS = (64, 80); EE = 96; PP = (112, 120); F0 = 128; T = 160
    A16, VK, VV, VK0, VV0, VST, QAD, OAD = 2, 3, 4, 5, 6, 7, 28, 29
    KA = lambda b: F0 + 16*b; KBr = lambda b: F0 + 16*b + 4; VA = lambda b: F0 + 16*b + 8
    s_task, s_h, s_tok, s_src, s_chd, s_rs, s_ldw, s_it, s_goff = 54, 55, 56, 57, 58, 59, 60, 61, 62
    ONES = 81920; BOX = 92160
    t = T
    poll_dbg_ge(a, DBG_T2, 30, t); poll_dbg_ge(a, DBG_GATE, 8, t)
    a("s_barrier")
    a(f"v_lshlrev_b32 v{A16}, 4, v{V_LANE}\nv_lshlrev_b32 v{t}, 4, v0\nv_add_u32 v{t}, {ONES}, v{t}")
    for r in range(4): a(f"v_mov_b32 v{t+4+r}, 0x3f803f80")
    for k in range(3): a(f"ds_write_b128 v{t}, v[{t+4}:{t+7}] offset:{k*4096}")
    a(f"v_and_b32 v{t}, 31, v{V_LANE}\nv_lshrrev_b32 v{t+1}, 5, v{V_LANE}")
    a(f"v_lshlrev_b32 v{VK0}, 3, v{t}\nv_mov_b32 v{QAD}, v{VK0}\nv_lshl_add_u32 v{VK0}, v{t+1}, 9, v{VK0}")
    a(f"v_mul_u32_u24 v{t+2}, 320, v{t+1}\nv_lshl_add_u32 v{t+2}, v{t}, 4, v{t+2}\nv_add_u32 v{t+2}, 10240, v{t+2}\nv_mov_b32 v{t+3}, {ONES}\nv_cmp_gt_u32 vcc, 20, v{t}\nv_cndmask_b32 v{VV0}, v{t+3}, v{t+2}, vcc")
    a(f"v_mov_b32 v{t+3}, 20480\nv_cndmask_b32 v{VST}, 0, v{t+3}, vcc")
    a(f"v_mul_u32_u24 v{OAD}, 1280, v{t}\nv_lshl_add_u32 v{OAD}, v{t+1}, 3, v{OAD}")
    a(f"s_mov_b32 s64, 0\ns_mov_b32 s65, -1")
    for b in range(2): a(f"v_mov_b32 v{KBr(b)+2}, 0x3f80\nv_mov_b32 v{KBr(b)+3}, 0")
    a(f"s_and_b32 s{S_T0}, s{S_WAVE}, 1\ns_mul_i32 s{S_T0}, s{S_T0}, 5120\ns_cmp_lt_u32 s{S_WAVE}, 2\ns_mov_b32 s{S_T1}, {VB}\ns_cselect_b32 s63, {KB}, s{S_T1}\ns_add_u32 s63, s63, s{S_T0}")
    a(f"s_mul_i32 s66, s{S_WAVE}, 5120")
    Ltask = a.label("t3task"); Lend = a.label("t3end")
    a(f"{Ltask}:")
    Lw = a.label("t3w")
    a(f"s_waitcnt lgkmcnt(0)\ns_barrier\ns_cmp_lg_u32 s{S_WAVE}, 0\ns_cbranch_scc1 {Lw}")
    a(f"v_mov_b32 v{t}, {DBG_Q*4}\nv_mov_b32 v{t+1}, 1\nv_mov_b32 v{t+3}, {BOX + 1024}\ns_mov_b64 exec, 1")
    a(f"global_atomic_add v{t+2}, v{t}, v{t+1}, s[{P_DBG}:{P_DBG+1}] sc0 sc1\ns_waitcnt vmcnt(0)\nds_write_b32 v{t+3}, v{t+2}\ns_mov_b64 exec, -1\ns_waitcnt lgkmcnt(0)")
    a(f"{Lw}:\ns_barrier\nv_mov_b32 v{t+3}, {BOX + 1024}\nds_read_b32 v{t+2}, v{t+3}\ns_waitcnt lgkmcnt(0)\nv_readfirstlane_b32 s{s_task}, v{t+2}")
    a(f"s_cmp_ge_u32 s{s_task}, 256\ns_cbranch_scc1 {Lend}")
    a(f"s_lshr_b32 s{s_h}, s{s_task}, 3\ns_and_b32 s{s_tok}, s{s_task}, 7\ns_lshl_b32 s{s_tok}, s{s_tok}, 3\ns_lshl_b32 s{S_T0}, s{S_WAVE}, 1\ns_add_u32 s{s_tok}, s{s_tok}, s{S_T0}")
    a(f"s_mul_i32 s{S_T0}, s{s_h}, 81920\ns_add_u32 s{s_src}, s63, s{S_T0}")
    a(f"s_mul_i32 s{S_T1}, s{s_tok}, 1280\ns_add_u32 s{S_T1}, s{S_T1}, s{S_T0}\ns_add_u32 s{S_T1}, s{S_T1}, {QB}")
    a(f"s_lshl_b32 s{s_goff}, s{s_tok}, 8\ns_add_u32 s{s_goff}, s{s_goff}, {GT + 4}")
    a(f"v_mov_b32 v{t}, {OOB}\nv_cndmask_b32 v{t}, v{QAD}, v{t}, s[64:65]")
    for q in range(2):
        a(f"buffer_load_dwordx2 v[{QA[q]}:{QA[q]+1}], v{VK0}, s[4:7], s{S_T1} offen offset:{1280*q} sc1\nbuffer_load_dwordx2 v[{QA[q]+2}:{QA[q]+3}], v{VK0}, s[4:7], s{S_T1} offen offset:{1280*q+256} sc1")
        a(f"buffer_load_dwordx2 v[{QBr[q]}:{QBr[q]+1}], v{t}, s[4:7], s{S_T1} offen offset:{1280*q+1024} sc1")
        a(f"buffer_load_dword v{G1[q]}, v{QAD}, s[4:7], s{s_goff} offen offset:{256*q} sc1")
        a(f"v_mov_b32 v{QBr[q]+2}, 0\nv_mov_b32 v{QBr[q]+3}, 0\nv_mov_b32 v{MF[q]}, 0")
        for r in range(16): a(f"v_mov_b32 v{OA[q]+r}, 0")
        for r in range(8): a(f"v_mov_b32 v{PP[q]+r}, 0")
    for r in range(8): a(f"v_mov_b32 v{VA(1)+r}, 0")
    def dma_chunk():
        r = []
        for k in range(5):
            r.append([f"s_add_u32 m0, s{s_ldw}, {k*1024}", f"s_add_u32 s{S_T1}, s{s_src}, {k*1024}", f"buffer_load_dwordx4 v{A16}, s[4:7], s{S_T1} offen sc1 lds"])
        r.append([f"s_add_u32 s{s_src}, s{s_src}, 10240", f"s_add_u32 s{s_chd}, s{s_chd}, 1", f"s_and_b32 s{S_T1}, s{s_chd}, 3", f"s_mul_i32 s{S_T1}, s{S_T1}, 20480", f"s_add_u32 s{s_ldw}, s66, s{S_T1}"])
        return r
    a(f"s_mov_b32 s{s_chd}, 0\ns_mov_b32 s{s_ldw}, s66\ns_mov_b32 s{s_rs}, 0\ns_mov_b32 s{s_it}, 0")
    for ch in range(2):
        for grp in dma_chunk():
            for x in grp: a(x)
    a(f"v_mov_b32 v{VK}, v{VK0}\nv_mov_b32 v{VV}, v{VV0}")
    a("s_waitcnt vmcnt(5)\ns_barrier")
    def rdK(b, j): return [f"ds_read2_b64 v[{KA(b)}:{KA(b)+3}], v{VK} offset0:{(j*1280)//8 % 256} offset1:{(j*1280+256)//8 % 256}" if False else None]
    def readK(b, j):
        return [f"ds_read_b64 v[{KA(b)}:{KA(b)+1}], v{VK} offset:{j*1280}", f"ds_read_b64 v[{KA(b)+2}:{KA(b)+3}], v{VK} offset:{j*1280+256}",
                f"ds_read_b64 v[{KBr(b)}:{KBr(b)+1}], v{30} offset:{j*1280+1024}"]
    def readV(b, j): return [f"ds_read_b128 v[{VA(b)+4*m}:{VA(b)+4*m+3}], v{VV} offset:{j*1280 + m*640}" for m in range(2)]
    a(f"v_and_b32 v30, 0xff, v{VK0}")
    for x in readK(0, 0) + readV(0, 0): a(x)
    mm = lambda d, A, B, C: f"v_mfma_f32_32x32x16_bf16 v[{d}:{d+15}], v[{A}:{A+3}], v[{B}:{B+3}], {C}"
    def QK(q, b): return [mm(SS[q], KA(b), QA[q], "0"), mm(SS[q], KBr(b), QBr[q], f"v[{SS[q]}:{SS[q]+15}]")]
    def PV(q, b): return [mm(OA[q], VA(b) + 4*m, PP[q] + 4*m, f"v[{OA[q]}:{OA[q]+15}]") for m in range(2)]
    def adjust(q, first):
        S_ = SS[q]
        a(f"v_max3_f32 v{T}, v{S_}, v{S_+1}, v{S_+2}")
        for k in range(3, 15, 2): a(f"v_max3_f32 v{T}, v{T}, v{S_+k}, v{S_+k+1}")
        a(f"v_max_f32 v{T}, v{T}, v{S_+15}\nv_mov_b32 v{T+1}, v{T}\nv_permlane32_swap_b32 v{T}, v{T+1}\nv_max_f32 v{T}, v{T}, v{T+1}")
        a(f"v_add_f32 v{T}, 0x40c00000, v{T}\nv_add_f32 v{T}, v{T}, v{MF[q]}\nv_cvt_pk_bf16_f32 v{T}, v{T}, v{T}\nv_lshlrev_b32 v{T}, 16, v{T}")
        if not first: a(f"v_max_f32 v{T}, v{T}, v{MF[q]}")
        a(f"v_sub_f32 v{T+2}, v{T}, v{MF[q]}\nv_mov_b32 v{MF[q]}, v{T}")
        for k in range(8): a(f"v_pk_add_f32 v[{S_+2*k}:{S_+2*k+1}], v[{S_+2*k}:{S_+2*k+1}], v[{T+2}:{T+3}] op_sel_hi:[1,0] neg_lo:[0,1] neg_hi:[0,1]")
        if not first:
            a(f"v_exp_f32 v{T+2}, -v{T+2}")
            for k in range(8): a(f"v_pk_mul_f32 v[{OA[q]+2*k}:{OA[q]+2*k+1}], v[{OA[q]+2*k}:{OA[q]+2*k+1}], v[{T+2}:{T+3}] op_sel_hi:[1,0]")
        a(f"v_xor_b32 v{T}, 0x80000000, v{T}\nv_lshrrev_b32 v{T}, 16, v{T}\nv_cndmask_b32 v{QBr[q]+2}, v{T}, 0, s[64:65]")
    a("s_waitcnt vmcnt(5) lgkmcnt(0)")
    for q in range(2):
        for x in QK(q, 0): a(x)
    adjust(0, True); adjust(1, True)
    rare = []
    def unit(q, mf1, mf2, extra):
        S_ = SS[q]; P_ = PP[q]
        seq = []
        for k in range(8):
            seq.append(f"v_exp_f32 v{EE+2*k}, v{S_+2*k}"); seq.append(f"v_exp_f32 v{EE+2*k+1}, v{S_+2*k+1}")
            if k >= 1: seq.append(f"v_cvt_pk_bf16_f32 v{P_+k-1}, v{EE+2*k-2}, v{EE+2*k-1}")
            if k == 3: seq.append(f"v_or3_b32 v{T+4}, v{P_}, v{P_+1}, v{P_+2}")
            if k == 5: seq.append(f"v_or3_b32 v{T+4}, v{T+4}, v{P_+3}, v{P_+4}")
            if k == 7: seq.append(f"v_or3_b32 v{T+4}, v{T+4}, v{P_+5}, v{P_+6}")
        seq.append(f"v_cvt_pk_bf16_f32 v{P_+7}, v{EE+14}, v{EE+15}")
        seq.append(f"v_or_b32 v{T+4}, v{T+4}, v{P_+7}")
        seq.append(f"v_and_b32 v{T+4}, 0x40004000, v{T+4}")
        seq.append(f"v_cmp_ne_u32 vcc, 0, v{T+4}")
        ins = {0: mf1[0:1], 4: mf1[1:2], 9: mf2[0:1], 15: mf2[1:2]}
        for pos, x in extra: ins.setdefault(pos, []); ins[pos] = ins[pos] + [x]
        for i, x in enumerate(seq):
            for y in ins.get(i, []): a(y)
            a(x)
        Lr = a.label("t3r"); Lb = a.label("t3b")
        a(f"s_cbranch_vccnz {Lr}\n{Lb}:")
        rare.append((Lr, Lb, q))
    Lch = a.label("t3ch")
    a(f"{Lch}:")
    for j in range(8):
        b = j & 1; nb = 1 - b
        ex = []
        if j == 7:
            a(f"s_add_u32 s{s_rs}, s{s_rs}, 1\ns_and_b32 s{s_rs}, s{s_rs}, 3\ns_mul_i32 s{S_T0}, s{s_rs}, 20480\nv_add_u32 v{VK}, s{S_T0}, v{VK0}\nv_and_b32 v30, 0xff, v{VK0}\nv_add_u32 v30, s{S_T0}, v30\nv_mad_u32_u24 v{VV}, v{VST}, s{s_rs}, v{VV0}")
            a("s_waitcnt vmcnt(5)\ns_barrier")
        jn = (j + 1) % 8
        rk = readK(nb, jn); rv = readV(nb, jn)
        ex = [(1, rk[0]), (2, rk[1]), (3, rk[2]), (19, rv[0]), (21, rv[1])]
        if j == 0:
            for gi, grp in enumerate(dma_chunk()):
                for x in grp: ex.append((5 + 3*gi, x))
        unit(0, QK(1, b), PV(1, nb), ex)
        a("s_waitcnt lgkmcnt(0)")
        unit(1, QK(0, nb), PV(0, b), [])
    a(f"s_add_u32 s{s_it}, s{s_it}, 1\ns_cmp_lt_u32 s{s_it}, 8\ns_cbranch_scc1 {Lch}")
    for x in PV(1, 1): a(x)
    a(f"s_mul_i32 s{S_T0}, s{s_tok}, {32*1280}\ns_mul_i32 s{S_T1}, s{s_h}, 40\ns_add_u32 s{S_T0}, s{S_T0}, s{S_T1}\ns_add_u32 s{S_T0}, s{S_T0}, {OB}\ns_add_u32 s{S_T1}, s{S_T0}, {32*1280}")
    a(f"v_mov_b32 v{T+6}, {OOB}\nv_cndmask_b32 v{T+6}, v{OAD}, v{T+6}, s[64:65]")
    for q in range(2):
        O_ = OA[q]
        a(f"v_mov_b32 v{T}, v{O_+8}\nv_mov_b32 v{T+2}, v{O_+8}\nv_permlane32_swap_b32 v{T}, v{T+2}\nv_rcp_f32 v{T+2}, v{T+2}\nv_mul_f32 v{T+2}, v{T+2}, v{G1[q]}")
        for i in range(3):
            for k in range(2): a(f"v_pk_mul_f32 v[{O_+4*i+2*k}:{O_+4*i+2*k+1}], v[{O_+4*i+2*k}:{O_+4*i+2*k+1}], v[{T+2}:{T+3}] op_sel_hi:[1,0]")
            e = EE + 2*(3*q + i)
            for x in cvt4(e, O_ + 4*i): a(x)
            a(f"buffer_store_dwordx2 v[{e}:{e+1}], v{OAD if i < 2 else T+6}, s[4:7], s{S_T0 if q == 0 else S_T1} offen offset:{16*i} sc1")
    a("s_waitcnt vmcnt(0)")
    a(f"s_branch {Ltask}")
    for (Lr, Lb, q) in rare:
        a(f"{Lr}:")
        adjust(q, False)
        for k in range(16): a(f"v_exp_f32 v{EE+k}, v{SS[q]+k}")
        for k in range(8): a(f"v_cvt_pk_bf16_f32 v{PP[q]+k}, v{EE+2*k}, v{EE+2*k+1}")
        a(f"s_branch {Lb}")
    a(f"{Lend}:")
    dbg_add(a, DBG_T3, t)

def role_T3b(a, cfg):
    E_ = Eng; t = E_.V_T
    s_nn, s_i, s_eseg, s_seen = 76, 77, 78, 79
    a(f"s_mul_i32 s{s_i}, s{S_T3}, 13108\ns_lshr_b32 s{s_i}, s{s_i}, 16\ns_mul_i32 s{S_T0}, s{s_i}, 5\ns_sub_u32 s{s_nn}, s{S_T3}, s{S_T0}")
    srd(a, 8, P_WOB, D*D*2); srd(a, 12, P_OUT, S*D*2)
    lane_rows(a, E_.V_EA, 4, 1280)
    a(f"s_mul_i32 s{S_T0}, s{S_WAVE}, {8*1280}\ns_lshl_b32 s{E_.S_WA}, s{s_nn}, 8\ns_add_u32 s{E_.S_WA}, s{E_.S_WA}, s{S_T0}")
    a(f"s_lshl_b32 s{S_T0}, s{S_WAVE}, 6")
    tr_addr(a, E_.V_EA+1, 8, 4, S_T0)
    def reads(u, base):
        return [f"ds_read_b64_tr_b16 {wreg2(u*2 + tau, m)}, v{E_.V_EA+1} offset:{base + tau*8 + m*1024}" for tau in range(2) for m in range(2)]
    a("s_barrier")
    stage_weights(a, 20, [(8, E_.V_EA, E_.S_WA, lambda u, k: (32*u + 4*k)*1280, 2, 0)], reads, 8, lds0=0)
    stream_rowmajor(a)
    a(f"s_mul_i32 s{S_T0}, s{s_i}, 40960\ns_add_u32 s{E_.S_SOFF}, s{S_T0}, {OB}\ns_mov_b32 s{E_.S_ENX}, s{S_T0}\ns_mov_b32 s{E_.S_EST}, {16*40960}\ns_mov_b32 s{E_.S_NSEG}, 4")
    a(f"s_sub_u32 s{s_eseg}, s{s_i}, 16\ns_mov_b32 s{s_seen}, 0")
    a(f"s_lshl_b32 s{S_T0}, s{s_nn}, 8\ns_lshl_b32 s{S_T1}, s{S_WAVE}, 6\ns_add_u32 s{S_T0}, s{S_T0}, s{S_T1}")
    a(f"v_and_b32 v{t}, 15, v{V_LANE}\nv_mul_u32_u24 v{t}, 1280, v{t}\nv_lshrrev_b32 v{t+1}, 4, v{V_LANE}\nv_lshl_add_u32 v{t}, v{t+1}, 4, v{t}\nv_add_u32 v{E_.V_EA}, s{S_T0}, v{t}\nv_add_u32 v{E_.V_EA+1}, 20480, v{E_.V_EA}")
    a(f"s_lshl_b32 s{S_T0}, s{S_WAVE}, 12\nv_lshlrev_b32 v{t}, 4, v{V_LANE}\nv_add_u32 v{E_.V_EA+2}, s{S_T0}, v{t}")
    a(f"s_lshl_b32 s{S_T0}, s{s_nn}, 9\ns_add_u32 s{S_T0}, s{S_T0}, {F_T5}\nv_min_u32 v{t}, 3, v{V_LANE}\nv_lshl_add_u32 v{E_.V_EA+3}, v{t}, 7, s{S_T0}")
    poll_dbg_ge(a, DBG_T3, 128, t)
    stamp(a, 5)
    def epi_block(a, acc, final):
        Ls = a.label("t3bs"); P = E_.V_EP
        a(f"s_cmp_lt_i32 s{s_eseg}, 0\ns_cbranch_scc1 {Ls}")
        poll3(a, E_.V_EA+3, t, s_eseg, s_seen, 4)
        a(f"s_mul_i32 s{S_T0}, s{s_eseg}, 5\ns_add_u32 s{S_T0}, s{S_T0}, s{s_nn}\ns_lshl_b32 s{S_T0}, s{S_T0}, 16\ns_add_u32 s{S_T0}, s{S_T0}, {PART}")
        for src in range(4):
            for i in range(4): a(f"buffer_load_dwordx4 v[{P+16*src+4*i}:{P+16*src+4*i+3}], v{E_.V_EA+2}, s[4:7], s{S_T0} offen offset:{1024*i} sc1")
            if src < 3: a(f"s_add_u32 s{S_T0}, s{S_T0}, 16384")
        for src in range(4):
            a(f"s_waitcnt vmcnt({12 - 4*src})")
            for k in range(8): a(f"v_pk_add_f32 v[{acc+2*k}:{acc+2*k+1}], v[{acc+2*k}:{acc+2*k+1}], v[{P+16*src+2*k}:{P+16*src+2*k+1}]")
        for tt in range(2):
            for tau in range(2):
                for x in cvt4(P + 4*tt + 2*tau, acc + 4*(2*tau + tt)): a(x)
            a(f"buffer_store_dwordx4 v[{P+4*tt}:{P+4*tt+3}], v{E_.V_EA+tt}, s[12:15], s{E_.S_EOFF} offen")
        a(f"{Ls}:\ns_add_u32 s{s_eseg}, s{s_eseg}, 16")
    engine(a, "t3b", 20, 2, "AA", 1, 4, lambda p: 16*40960, 'row', lambda acc: [], 0, xflags="sc1", epi_block=epi_block)
    stamp(a, 6)

def role_B(a, cfg):
    L = a.label("b2")
    dbg_add(a, DBG_INIT)
    a(f"s_sub_u32 s{S_T3}, s{S_ROLE}, 96\ns_cmp_ge_u32 s{S_T3}, 30\ns_cbranch_scc1 {L}")
    role_T2(a, cfg)
    a(f"{L}:")
```

```python
from gen_eng import *
DBG_WLD = 10
class Ch:
    MEMR = 8; DQ = 48; DK = 52; DV = 56; AO = 60; KXR = 100; VXR = 108; QOP = 124; SD = 132; VMR = 136; AL = 140
    PP = 170
    SEL = 178
    A16 = 2
    AST = 3; ALD = 4; BST = 5; BLD = 6; MST = 7
    KMA = 182; LQW = 183; LTR = 184; LVW = 185; IDX = 186; KDA = 187; FLA = 188; T = 189
    WV = 192
    S_S = 54; S_TAG = 55; S_MEM = 56; S_MEMX = 57; S_BCUR = 58; S_BOTH = 59; S_MODE = 60; S_OWN = 61
    S_SEEN = 62; S_PM = 63; S_HALF = 64; S_SC = 66
    S_ABASE = 68; S_B1 = 69; S_B2 = 70; S_B3 = 71; S_KV = 72; S_KMO = 73; S_MSIG = 74; S_M4 = 75; S_T1F = 76
LQ = 0; LK = 2048; LV = 4096; LKX = 8192; LVX = 16384

def wq(sg): return f"a[{8*sg}:{8*sg+7}]"
def wk(sg): return f"a[{80+8*sg}:{80+8*sg+7}]"
def wv(sg): return f"a[{160+8*sg}:{160+8*sg+7}]"
def wo(T): return f"a[{240+8*T}:{240+8*T+7}]" if T < 2 else f"v[{Ch.WV+8*(T-2)}:{Ch.WV+8*(T-2)+7}]"
def wpair(base, m):
    return f"{base[0]}[{base[1]+2*m}:{base[1]+2*m+1}]"

def spin_fail(a, target):
    a(f"s_add_u32 s{S_SPIN}, s{S_SPIN}, 1\ns_cmp_gt_u32 s{S_SPIN}, {SPIN_MAX}\ns_cbranch_scc1 {target}")

def sp(a, i):
    if not CFG.get("sprof"): return
    a(f"s_memtime s[96:97]\ns_waitcnt lgkmcnt(0)\ns_sub_u32 s98, s96, s99\ns_add_u32 s{16+i}, s{16+i}, s98\ns_mov_b32 s99, s96")
def cnt(a, i):
    if CFG.get("sprof"): a(f"s_add_u32 s{16+i}, s{16+i}, 1")

def role_chain(a, cfg):
    C = Ch; t = Eng.V_T
    R = S_ROLE
    srd(a, 8, P_WQ, D*H*E*2); srd(a, 12, P_WK, D*H*E*2); srd(a, 80, P_WV, D*H*E*2); srd(a, 84, P_WO, D*H*E*2)
    lane_rows(a, 100, 3, 12288)
    a(f"s_mul_i32 s{S_T0}, s{S_WAVE}, {16*12288}\ns_lshl_b32 s88, s{R}, 7\ns_add_u32 s88, s88, s{S_T0}")
    a(f"v_lshlrev_b32 v{C.A16}, 4, v{V_LANE}")
    a(f"s_mul_i32 s89, s{R}, 81920\ns_mul_i32 s{S_T0}, s{S_WAVE}, 20480\ns_add_u32 s89, s89, s{S_T0}")
    a(f"v_bfe_u32 v{t}, v{V_LANE}, 2, 2\nv_lshlrev_b32 v{t}, 11, v{t}\nv_lshrrev_b32 v{t+1}, 4, v{V_LANE}\nv_lshl_add_u32 v{t}, v{t+1}, 8, v{t}")
    a(f"v_and_b32 v{t+1}, 3, v{V_LANE}\nv_lshl_add_u32 v{t}, v{t+1}, 3, v{t}\ns_lshl_b32 s{S_T0}, s{S_WAVE}, 5\nv_add_u32 v101, s{S_T0}, v{t}\nv_add_u32 v103, 16384, v101")
    a(f"v_bfe_u32 v{t}, v{V_LANE}, 3, 1\nv_lshlrev_b32 v{t}, 5, v{t}\nv_bfe_u32 v{t+1}, v{V_LANE}, 2, 1\nv_add_u32 v{t}, v{t}, v{t+1}")
    a(f"v_bfe_u32 v{t+1}, v{V_LANE}, 4, 1\nv_lshl_add_u32 v{t}, v{t+1}, 4, v{t}\nv_lshrrev_b32 v{t+1}, 5, v{V_LANE}\nv_lshl_add_u32 v{t}, v{t+1}, 2, v{t}")
    a(f"v_mul_u32_u24 v{t}, 1280, v{t}\nv_and_b32 v{t+1}, 3, v{V_LANE}\nv_lshl_add_u32 v{t}, v{t+1}, 3, v{t}")
    a(f"s_mul_i32 s{S_T0}, s{S_WAVE}, 320\ns_add_u32 s{S_T0}, s{S_T0}, 73728\nv_add_u32 v102, s{S_T0}, v{t}")
    def reads(u, base):
        r = []
        for mi, wb in enumerate((8*u, 80 + 8*u, 160 + 8*u)):
            for m, mo in enumerate((0, 128, 1024, 1152)):
                r.append(f"ds_read_b64_tr_b16 a[{wb+2*m}:{wb+2*m+1}], v{103 if mi == 2 else 101} offset:{base + (mi % 2)*8192 + mo}")
        return r
    def early(a):
        for k in range(20):
            a(f"s_mul_i32 s{S_T2}, s{S_WAVE}, 20480\ns_add_u32 m0, s{S_T2}, {73728 + k*1024}\ns_add_u32 s{S_T1}, s89, {k*1024}")
            a(f"buffer_load_dwordx4 v{C.A16}, s[84:87], s{S_T1} offen nt lds")
        return 20
    so = lambda u, k: (64*u + 8*k)*12288
    stage_weights(a, 10, [(8, 100, 88, so, 2, 0), (12, 100, 88, so, 2, 8192), (80, 100, 88, so, 2, 16384)], reads, 3, lds0=0, early=early)
    a("s_waitcnt vmcnt(0)\ns_barrier")
    for T in range(10):
        b = ('a', 240 + 8*T) if T < 2 else ('v', C.WV + 8*(T - 2))
        for m, eo in enumerate((0, 2, 8, 10)):
            a(f"ds_read_b64_tr_b16 {wpair(b, m)}, v102 offset:{T*32 + eo*1280}")
        if T % 3 == 2: a("s_waitcnt lgkmcnt(0)")
    a("s_waitcnt lgkmcnt(0)")
    dbg_add(a, DBG_WLD, t)
    stamp(a, 1)
    i_row8 = lambda d, tmp: a(f"v_bfe_u32 v{d}, v{V_LANE}, 2, 2\nv_and_b32 v{tmp}, 1, v{V_LANE}\nv_lshl_add_u32 v{d}, v{d}, 1, v{tmp}")
    a(f"s_mov_b32 s{C.S_HALF}, 0xcccccccc\ns_mov_b32 s{C.S_HALF+1}, 0xcccccccc")
    a(f"s_mov_b32 s{C.S_SC}, {f32bits(E**-0.5*math.log2(math.e))}\ns_mov_b32 s{C.S_SC+1}, s{C.S_SC}")
    a(f"v_mov_b32 v{t}, 0x4444\nv_mov_b32 v{t+1}, 0xeeee\nv_cndmask_b32 v{C.IDX}, v{t}, v{t+1}, s[{C.S_HALF}:{C.S_HALF+1}]")
    i_row8(t, t+1)
    a(f"v_lshrrev_b32 v{t+1}, 4, v{V_LANE}")
    a(f"v_lshlrev_b32 v{t+2}, 7, v{t+1}\nv_lshl_add_u32 v{C.ALD}, v{t}, 4, v{t+2}")
    a(f"v_mov_b32 v{t+2}, {OOB}\nv_cndmask_b32 v{C.KMA}, v{C.ALD}, v{t+2}, s[{C.S_HALF}:{C.S_HALF+1}]")
    a(f"s_lshl_b32 s{S_T0}, s{R}, 11\ns_lshl_b32 s{S_T1}, s{S_WAVE}, 9\ns_add_u32 s{S_T0}, s{S_T0}, s{S_T1}\ns_add_u32 s{S_T0}, s{S_T0}, {ABUF}")
    a(f"s_cmp_eq_u32 s{S_WAVE}, 3\ns_cselect_b32 s{S_T0}, {OOB}, s{S_T0}\nv_add_u32 v{C.AST}, s{S_T0}, v{C.ALD}\nv_cndmask_b32 v{C.AST}, v{C.AST}, v{t+2}, s[{C.S_HALF}:{C.S_HALF+1}]")
    a(f"s_mul_i32 s{S_T0}, s{R}, 21846\ns_lshr_b32 s{S_T0}, s{S_T0}, 16\ns_mul_i32 s{C.S_ABASE}, s{S_T0}, 6144\ns_add_u32 s{C.S_ABASE}, s{C.S_ABASE}, {ABUF}")
    a(f"v_bfe_u32 v{t+2}, v{V_LANE}, 2, 2\nv_mul_u32_u24 v{t+2}, 49152, v{t+2}\nv_lshl_add_u32 v{t+2}, v{t+1}, 6, v{t+2}\nv_and_b32 v{t+3}, 3, v{V_LANE}\nv_lshl_add_u32 v{t+2}, v{t+3}, 4, v{t+2}")
    a(f"s_lshr_b32 s{S_T0}, s{R}, 5\ns_lshl_b32 s{S_T0}, s{S_T0}, 14\ns_and_b32 s{S_T1}, s{R}, 31\ns_lshl_b32 s{S_T1}, s{S_T1}, 8\ns_add_u32 s{S_T0}, s{S_T0}, s{S_T1}\nv_add_u32 v{C.BST}, s{S_T0}, v{t+2}")
    GS = 4*49152
    a(f"s_lshr_b32 s{S_T0}, s{S_WAVE}, 1\ns_mul_i32 s{S_T0}, s{S_T0}, {5*GS}\ns_and_b32 s{S_T1}, s{S_WAVE}, 1\ns_mul_i32 s{S_T2}, s{S_T1}, {2*GS + 8}")
    a(f"s_add_u32 s{C.S_B1}, s{S_T0}, s{S_T2}\ns_mul_i32 s{S_T2}, s{S_T1}, {2*GS}\ns_add_u32 s{S_T0}, s{S_T0}, s{S_T2}\ns_add_u32 s{C.S_B2}, s{S_T0}, {GS}\ns_add_u32 s{C.S_B3}, s{S_T0}, {2*GS}")
    a(f"s_lshl_b32 s{S_T0}, s{R}, 1\ns_add_u32 s{S_T0}, s{S_T0}, s{S_WAVE}\ns_add_u32 s{S_T1}, s{R}, 64\ns_cmp_lt_u32 s{R}, 64\ns_cselect_b32 s{S_T0}, s{S_T0}, s{S_T1}\ns_cselect_b32 s{S_T1}, 2, 1")
    a(f"s_cmp_lt_u32 s{S_WAVE}, s{S_T1}\ns_cselect_b32 s{C.S_OWN}, 1, 0\ns_cselect_b32 s{S_T0}, s{S_T0}, 0")
    a(f"s_lshr_b32 s{S_T1}, s{S_T0}, 2\ns_and_b32 s{S_T2}, s{S_T0}, 3")
    a(f"s_mul_i32 s{S_T3}, s{S_T1}, 49152\ns_lshl_b32 s{S_T4}, s{S_T2}, 6\ns_add_u32 s{S_T3}, s{S_T3}, s{S_T4}")
    a(f"v_lshrrev_b32 v{t+2}, 2, v{V_LANE}\nv_lshlrev_b32 v{t+2}, 8, v{t+2}\nv_lshl_add_u32 v{t+2}, v{t+3}, 4, v{t+2}\nv_add_u32 v{C.BLD}, s{S_T3}, v{t+2}")
    a(f"s_lshr_b32 s{C.S_MSIG}, s{S_T1}, 2\ns_and_b32 s{S_T1}, s{S_T1}, 3\ns_lshl_b32 s{S_T1}, s{S_T1}, 8\ns_add_u32 s{S_T1}, s{S_T1}, s{S_T4}")
    a(f"s_and_b32 s{S_T3}, s{C.S_MSIG}, 7\ns_lshl_b32 s{S_T3}, s{S_T3}, 10\ns_add_u32 s{S_T1}, s{S_T1}, s{S_T3}")
    a(f"v_and_b32 v{t+2}, 1, v{t+1}\nv_lshlrev_b32 v{t+2}, 1, v{t+2}\nv_lshrrev_b32 v{t+3}, 1, v{t+1}\nv_add_u32 v{t+2}, v{t+2}, v{t+3}\nv_lshlrev_b32 v{t+2}, 2, v{t+2}\nv_lshl_add_u32 v{t+2}, v{t}, 4, v{t+2}")
    a(f"v_add_u32 v{t+2}, s{S_T1}, v{t+2}\nv_and_b32 v{t+3}, 10, v{V_LANE}\nv_cmp_eq_u32 vcc, 0, v{t+3}\nv_mov_b32 v{t+3}, {OOB}\nv_cndmask_b32 v{C.MST}, v{t+3}, v{t+2}, vcc")
    a(f"v_and_b32 v{t+2}, 15, v{V_LANE}")
    for r in range(4):
        a(f"v_mov_b32 v{C.SEL+r}, 0\nv_mov_b32 v{t+3}, 0x3f80\nv_cmp_eq_u32 vcc, {2*r}, v{t+2}\nv_cndmask_b32 v{C.SEL+r}, v{C.SEL+r}, v{t+3}, vcc")
        a(f"v_mov_b32 v{t+3}, 0x3f800000\nv_cmp_eq_u32 vcc, {2*r+1}, v{t+2}\nv_cndmask_b32 v{C.SEL+r}, v{C.SEL+r}, v{t+3}, vcc")
    a(f"s_lshl_b32 s{S_T0}, s{S_WAVE}, 9\nv_lshlrev_b32 v{C.LQW}, 5, v{t+2}\nv_lshl_add_u32 v{C.LQW}, v{t+1}, 3, v{C.LQW}\nv_add_u32 v{C.LQW}, s{S_T0}, v{C.LQW}")
    a(f"s_mov_b32 s{S_T0}, 0")
    tr_addr(a, C.LTR, 5, 3, S_T0)
    a(f"s_lshl_b32 s{S_T0}, s{S_WAVE}, 2\ns_add_u32 s{S_T0}, s{S_T0}, {LV}\nv_add_u32 v{C.LVW}, s{S_T0}, v{C.A16}")
    a(f"v_lshrrev_b32 v{t}, 4, v{V_LANE}\nv_and_b32 v{t+1}, 15, v{V_LANE}\nv_lshlrev_b32 v{t}, 9, v{t}\nv_lshl_add_u32 v{C.KDA}, v{t+1}, 4, v{t}")
    a(f"s_lshl_b32 s{S_T0}, s{R}, 7\ns_add_u32 s{C.S_T1F}, s{S_T0}, {F_T1}\ns_add_u32 s{S_T0}, s{S_T0}, {F_CH}\nv_mov_b32 v{C.FLA}, s{S_T0}\nv_mov_b32 v{t}, {OOB}\nv_cmp_eq_u32 vcc, 0, v{V_LANE}\nv_cndmask_b32 v{C.FLA}, v{t}, v{C.FLA}, vcc")
    a(f"s_lshl_b32 s{C.S_KV}, s{R}, 12\ns_lshl_b32 s{C.S_KMO}, s{R}, 10\ns_mov_b32 s{C.S_SEEN}, 0\ns_mov_b32 s{C.S_S}, 0")
    for r in (C.PP+5, C.PP+6): a(f"v_mov_b32 v{r}, 0")
    for r in list(range(C.DQ, C.DQ+12)) + list(range(C.AO, C.AO+40)): a(f"v_mov_b32 v{r}, 0")
    poll_dbg_ge(a, DBG_INIT, 160, t)
    a(f"s_mul_i32 s{S_T0}, s{R}, 2731\ns_lshr_b32 s{S_T0}, s{S_T0}, 16")
    a(f"s_mul_i32 s{S_T1}, s{S_T0}, 24\ns_sub_u32 s{S_T1}, s{R}, s{S_T1}\ns_mul_i32 s{S_T1}, s{S_T1}, 21846\ns_lshr_b32 s{S_T1}, s{S_T1}, 16\ns_mul_i32 s{S_T1}, s{S_T1}, 3\ns_add_u32 s{S_T3}, s{S_T1}, 3")
    a(f"s_and_b32 s{S_T1}, s{S_T0}, 1\ns_lshl_b32 s{S_T1}, s{S_T1}, 7\ns_lshr_b32 s{S_T0}, s{S_T0}, 1\ns_lshl_b32 s{S_T0}, s{S_T0}, 2\ns_add_u32 s{S_T0}, s{S_T0}, s{S_T1}\nv_mov_b32 v{t}, s{S_T0}")
    a(f"global_load_dword v{t+1}, v{t}, s[{P_DBG}:{P_DBG+1}] sc1\nv_lshlrev_b32 v{t+2}, 7, v{V_LANE}\nv_add_u32 v{t+2}, {F_PAR}, v{t+2}")
    a(f"buffer_load_dword v{t+3}, v{t+2}, s[4:7], 0 offen sc1\ns_waitcnt vmcnt(0)")
    a(f"v_readfirstlane_b32 s{S_T0}, v{t+1}\ns_cmp_ge_u32 s{S_T0}, s{S_T3}\ns_cselect_b32 s{C.S_MODE}, 1, 0")
    if cfg.get("safe"): a(f"s_mov_b32 s{C.S_MODE}, 0")
    for k, (sr, base) in enumerate(((C.S_PM, R_MEM), (C.S_BCUR, R_B0))):
        if "par" in cfg: a(f"s_mov_b32 s{sr}, {cfg['par'] ^ k}")
        else: a(f"v_readlane_b32 s{sr}, v{t+3}, {k}")
        a(f"s_and_b32 s{sr}, s{sr}, 1\ns_lshl_b32 s{sr}, s{sr}, 13\ns_add_u32 s{sr}, s{sr}, {base}")
    def mem_offsets():
        a(f"s_lshl_b32 s{C.S_MEM}, s{C.S_S}, 14\ns_add_u32 s{C.S_MEM}, s{C.S_MEM}, s{C.S_PM}\ns_add_u32 s{C.S_M4}, s{C.S_MEM}, 4096")
        a(f"s_lshr_b32 s{C.S_MEMX}, s{C.S_S}, 2\ns_add_u32 s{C.S_MEMX}, s{C.S_MEMX}, 64\ns_lshl_b32 s{C.S_MEMX}, s{C.S_MEMX}, 14\ns_and_b32 s{S_T0}, s{C.S_S}, 3\ns_lshl_b32 s{S_T0}, s{S_T0}, 11")
        a(f"s_add_u32 s{C.S_MEMX}, s{C.S_MEMX}, s{S_T0}\ns_add_u32 s{C.S_MEMX}, s{C.S_MEMX}, s{C.S_PM}")
    mem_offsets()
    for sr in (C.S_B1, C.S_B2, C.S_B3): a(f"s_add_u32 s{sr}, s{sr}, s{C.S_BCUR}")
    boff = lambda L: (L >> 1)*16384 + (L & 1)*4096
    for L in range(6): a(f"s_add_u32 s{90+L}, s{C.S_BCUR}, {boff(L)}")
    def prefetch_kv(segs_ahead_reg_expr, buf_sreg):
        Lok = a.label("pf"); Lp = a.label("pfp"); Lv = a.label("pfv"); Le = a.label("pfe")
        a(f"s_cmp_gt_u32 s{C.S_SEEN}, s{S_T4}\ns_cbranch_scc1 {Lok}")
        a(f"s_mov_b32 s{S_SPIN}, 0\nv_mov_b32 v{C.T}, s{C.S_T1F}")
        a(f"{Lp}:\nbuffer_load_dword v{C.T+1}, v{C.T}, s[4:7], 0 offen sc1")
        spin_fail(a, Lok)
        a(f"s_waitcnt vmcnt(0)\nv_readfirstlane_b32 s{C.S_SEEN}, v{C.T+1}\ns_cmp_gt_u32 s{C.S_SEEN}, s{S_T4}\ns_cbranch_scc1 {Lok}\ns_sleep 2\ns_branch {Lp}")
        a(f"{Lok}:")
        a(f"s_mul_i32 s{S_T0}, s{S_T4}, {32*12288}\ns_add_u32 s{S_T0}, s{S_T0}, s{C.S_KV}\ns_and_b32 s{S_T2}, s{S_T4}, 1\ns_lshl_b32 s{S_T2}, s{S_T2}, 12")
        a(f"s_cmp_eq_u32 s{S_WAVE}, 3\ns_cbranch_scc1 {Lv}")
        for tt in range(2):
            for u in range(2):
                a(f"s_add_u32 m0, s{S_T2}, {LKX + (2*tt + u)*1024}\ns_add_u32 s{S_T1}, s{S_T0}, {KX + u*2048 + tt*256}")
                a(f"buffer_load_dwordx4 v{C.KDA}, s[4:7], s{S_T1} offen sc1 lds")
        a(f"s_branch {Le}\n{Lv}:")
        for T in range(4):
            a(f"s_add_u32 m0, s{S_T2}, {LVX + T*1024}\ns_add_u32 s{S_T1}, s{S_T0}, {VX + T*1024}")
            a(f"buffer_load_dwordx4 v{C.A16}, s[4:7], s{S_T1} offen sc1 lds")
        a(f"{Le}:")
    def read_kv(seg_sreg):
        a(f"s_and_b32 s{S_T0}, s{seg_sreg}, 1\ns_lshl_b32 s{S_T0}, s{S_T0}, 12\nv_add_u32 v{C.T}, s{S_T0}, v{C.A16}")
        for T in range(4): a(f"ds_read_b128 v[{C.VXR+4*T}:{C.VXR+4*T+3}], v{C.T} offset:{LVX + T*1024}")
        a(f"s_sub_u32 s{S_T0}, s{S_WAVE}, 1\ns_and_b32 s{S_T0}, s{S_T0}, 1\ns_lshl_b32 s{S_T0}, s{S_T0}, 11\nv_add_u32 v{C.T}, s{S_T0}, v{C.T}")
        for u in range(2): a(f"ds_read_b128 v[{C.KXR+4*u}:{C.KXR+4*u+3}], v{C.T} offset:{LKX + u*1024}")
    Lnp = a.label("np")
    a(f"s_cmp_lt_u32 s{S_WAVE}, 2\ns_cbranch_scc1 {Lnp}")
    for sg in range(2):
        a(f"s_mov_b32 s{S_T4}, {sg}")
        prefetch_kv(None, None)
    a(f"{Lnp}:\ns_waitcnt vmcnt(0)\ns_barrier")
    read_kv(C.S_S)
    a("s_waitcnt lgkmcnt(0)")
    stamp(a, 2, C.T)
    Lstep = a.label("step"); Lfinal = a.label("final"); Ldone = a.label("chdone")
    M = C.MEMR
    def cload(sg):
        so = C.S_MEM if sg < 4 else (C.S_M4 if sg < 8 else C.S_MEMX)
        return f"buffer_load_dwordx4 v[{M+4*sg}:{M+4*sg+3}], v{C.A16}, s[4:7], s{so} offen offset:{(sg % 4)*1024} sc1"
    sm = lambda d, A, B: f"v_smfmac_f32_16x16x64_bf16 v[{d}:{d+3}], v[{A}:{A+3}], {B}, v{C.IDX}"
    if cfg.get("sprof"):
        for i in range(16): a(f"s_mov_b32 s{16+i}, 0")
        a("s_memtime s[96:97]\ns_waitcnt lgkmcnt(0)\ns_mov_b32 s99, s96")
    a(f"{Lstep}:")
    sp(a, 0)
    a(f"s_and_b32 s{C.S_TAG}, s{C.S_S}, 1\ns_lshl_b32 s{C.S_TAG}, 1, s{C.S_TAG}\ns_mov_b32 s{S_SPIN}, 0")
    for sg in range(10): a(cload(sg))
    Lcc = [a.label("cc") for _ in range(10)]; Lcr = [a.label("cr") for _ in range(10)]
    for sg in range(10):
        m = M + 4*sg
        a(f"{Lcc[sg]}:\ns_waitcnt vmcnt({9-sg})")
        a(f"v_max3_u32 v{C.T}, v{m}, v{m+1}, v{m+2}\nv_max_u32 v{C.T}, v{C.T}, v{m+3}\nv_cmp_eq_u32 vcc, -1, v{C.T}\ns_cbranch_vccnz {Lcr[sg]}")
        a(sm(C.DQ, m, wq(sg))); a(sm(C.DK, m, wk(sg)))
    Lv = lambda sg: sm(C.DV, M + 4*sg, wv(sg))
    sp(a, 1)
    a(Lv(0)); a(Lv(1))
    a(f"v_mov_b32 v{C.T+1}, s{C.S_S}\ns_cmp_eq_u32 s{S_WAVE}, 3\ns_cselect_b32 s{S_T0}, 0, {OOB}")
    a(f"buffer_store_dword v{C.T+1}, v{C.FLA}, s[4:7], s{S_T0} offen sc1")
    AL = C.AL
    a(f"v_pk_add_f32 v[{C.DQ}:{C.DQ+1}], v[{C.DQ}:{C.DQ+1}], v[{C.DQ+2}:{C.DQ+3}]")
    a(f"v_pk_add_f32 v[{C.DK}:{C.DK+1}], v[{C.DK}:{C.DK+1}], v[{C.DK+2}:{C.DK+3}]")
    a(f"v_pk_mul_f32 v[{C.DQ}:{C.DQ+1}], v[{C.DQ}:{C.DQ+1}], s[{C.S_SC}:{C.S_SC+1}]")
    a(f"v_cvt_pk_bf16_f32 v{AL+2}, v{C.DK}, v{C.DK+1}\nv_cvt_pk_bf16_f32 v{AL+3}, v{C.DK}, v{C.DK+1}")
    a(f"v_cvt_pk_bf16_f32 v{AL}, v{C.DQ}, v{C.DQ+1}\nv_cvt_pk_bf16_f32 v{AL+1}, v{C.DQ}, v{C.DQ+1}")
    a(f"ds_write_b64 v{C.LQW}, v[{AL+2}:{AL+3}] offset:{LK}\nds_write_b64 v{C.LQW}, v[{AL}:{AL+1}] offset:{LQ}")
    a(Lv(2)); a(Lv(3))
    a("s_waitcnt lgkmcnt(0)\ns_barrier")
    for u in range(2):
        for m in range(2): a(f"ds_read_b64_tr_b16 v[{C.QOP+4*u+2*m}:{C.QOP+4*u+2*m+1}], v{C.LTR} offset:{LQ + u*1024 + m*128}")
    Lnk = a.label("nk")
    a(f"s_sub_u32 s{S_T0}, s{S_WAVE}, 1\ns_cmp_lt_u32 s{S_T0}, 2\ns_cbranch_scc1 {Lnk}")
    for u in range(2):
        for m in range(2): a(f"ds_read_b64_tr_b16 v[{C.KXR+4*u+2*m}:{C.KXR+4*u+2*m+1}], v{C.LTR} offset:{LK + u*1024 + m*128}")
    a(f"{Lnk}:")
    a(Lv(4)); a(Lv(5)); a(Lv(6))
    a("s_waitcnt lgkmcnt(0)")
    a(f"v_mfma_f32_16x16x32_bf16 v[{C.SD}:{C.SD+3}], v[{C.KXR}:{C.KXR+3}], v[{C.QOP}:{C.QOP+3}], 0")
    a(f"v_mfma_f32_16x16x32_bf16 v[{C.SD}:{C.SD+3}], v[{C.KXR+4}:{C.KXR+7}], v[{C.QOP+4}:{C.QOP+7}], v[{C.SD}:{C.SD+3}]")
    a(Lv(7)); a(Lv(8)); a(Lv(9))
    for r in range(4): a(f"v_bfi_b32 v{C.SD+r}, 3, s{C.S_TAG}, v{C.SD+r}")
    Ls = a.label("as"); Ls2 = a.label("as2")
    a(f"s_cmp_eq_u32 s{C.S_MODE}, 0\ns_cbranch_scc1 {Ls}")
    a(f"buffer_store_dwordx4 v[{C.SD}:{C.SD+3}], v{C.AST}, s[4:7], 0 offen\ns_branch {Ls2}")
    a(f"{Ls}:\nbuffer_store_dwordx4 v[{C.SD}:{C.SD+3}], v{C.AST}, s[4:7], 0 offen sc1\n{Ls2}:")
    sp(a, 2)
    a(f"v_pk_add_f32 v[{C.DV}:{C.DV+1}], v[{C.DV}:{C.DV+1}], v[{C.DV+2}:{C.DV+3}]\nv_cvt_pk_bf16_f32 v{C.T}, v{C.DV}, v{C.DV+1}\nds_write_b32 v{C.LVW}, v{C.T}")
    for r in range(12): a(f"v_mov_b32 v{C.DQ+r}, 0")
    a(f"s_waitcnt lgkmcnt(0)\ns_barrier\nds_read_b128 v[{C.VMR}:{C.VMR+3}], v{C.A16} offset:{LV}")
    a(f"s_cmp_eq_u32 s{C.S_S}, {NSEG-1}\ns_cbranch_scc1 {Lfinal}")
    if cfg.get("dA", 0): a(f"s_sleep {cfg['dA']}")
    La = a.label("ap"); Lax = a.label("apx")
    a(f"s_add_u32 s{S_T0}, s{C.S_ABASE}, 2048\ns_add_u32 s{S_T1}, s{C.S_ABASE}, 4096\ns_mov_b32 s{S_SPIN}, 0")
    a(f"{La}:")
    for j, so in enumerate((C.S_ABASE, S_T0, S_T1)):
        b = AL + 10*j
        a(f"buffer_load_dwordx4 v[{b}:{b+3}], v{C.ALD}, s[4:7], s{so} offen offset:512 sc1")
        a(f"buffer_load_dwordx4 v[{b+4}:{b+7}], v{C.ALD}, s[4:7], s{so} offen offset:1024 sc1")
        a(f"buffer_load_dwordx2 v[{b+8}:{b+9}], v{C.ALD}, s[4:7], s{so} offen sc1")
    cnt(a, 9)
    spin_fail(a, Lax)
    for j in range(3):
        b = AL + 10*j
        a(f"s_waitcnt vmcnt({6-3*j})")
        for k in range(5):
            if j == 0 and k == 0: a(f"v_and_b32 v{C.T}, v{b}, v{b+1}")
            else: a(f"v_bitop3_b32 v{C.T}, v{C.T}, v{b+2*k}, v{b+2*k+1} bitop3:0x80")
    a(f"v_and_b32 v{C.T}, s{C.S_TAG}, v{C.T}\nv_cmp_eq_u32 vcc, 0, v{C.T}\ns_cbranch_vccnz {La}")
    a(f"{Lax}:\ns_waitcnt vmcnt(0)")
    sp(a, 3)
    for j in (1, 2):
        for k in range(5): a(f"v_pk_add_f32 v[{AL+2*k}:{AL+2*k+1}], v[{AL+2*k}:{AL+2*k+1}], v[{AL+10*j+2*k}:{AL+10*j+2*k+1}]")
    T_, T1, T2 = C.T, C.T+1, AL+10
    a(f"v_max3_f32 v{T_}, v{AL}, v{AL+1}, v{AL+2}\nv_max3_f32 v{T1}, v{AL+3}, v{AL+4}, v{AL+5}\nv_max3_f32 v{T_}, v{T_}, v{AL+6}, v{AL+7}\nv_max3_f32 v{T1}, v{T1}, v{AL+8}, v{AL+9}\nv_max_f32 v{T_}, v{T_}, v{T1}")
    a(f"v_mov_b32 v{T1}, v{T_}\nv_permlane32_swap_b32 v{T_}, v{T1}\nv_max_f32 v{T_}, v{T_}, v{T1}\nv_mov_b32 v{T1}, v{T_}\nv_permlane16_swap_b32 v{T_}, v{T1}\nv_max_f32 v{T2}, v{T_}, v{T1}")
    for k in range(5): a(f"v_pk_add_f32 v[{AL+2*k}:{AL+2*k+1}], v[{AL+2*k}:{AL+2*k+1}], v[{T2}:{T2+1}] op_sel_hi:[1,0] neg_lo:[0,1] neg_hi:[0,1]")
    for k in range(8): a(f"v_exp_f32 v{AL+k}, v{AL+k}")
    PP = C.PP
    a(f"v_cvt_pk_bf16_f32 v{PP}, v{AL}, v{AL+1}\nv_cvt_pk_bf16_f32 v{PP+1}, v{AL+2}, v{AL+3}\nv_cvt_pk_bf16_f32 v{PP+2}, v{AL+4}, v{AL+5}\nv_cvt_pk_bf16_f32 v{PP+3}, v{AL+6}, v{AL+7}")
    a(f"v_exp_f32 v{AL+8}, v{AL+8}\nv_exp_f32 v{AL+9}, v{AL+9}\ns_waitcnt lgkmcnt(0)")
    OD = M
    pvx = lambda T: f"v_mfma_f32_16x16x32_bf16 v[{OD+4*T}:{OD+4*T+3}], v[{C.VXR+4*T}:{C.VXR+4*T+3}], v[{PP}:{PP+3}], 0"
    pvm = lambda T: f"v_mfma_f32_16x16x16_bf16 v[{OD+4*T}:{OD+4*T+3}], v[{C.VMR+2*(T>>1)}:{C.VMR+2*(T>>1)+1}], v[{PP+4+2*(T&1)}:{PP+5+2*(T&1)}], v[{OD+4*T}:{OD+4*T+3}]"
    a(pvx(0))
    a(f"v_cvt_pk_bf16_f32 v{PP+4}, v{AL+8}, v{AL+9}\nv_cvt_pk_bf16_f32 v{PP+7}, v{AL+8}, v{AL+9}")
    a(pvx(1))
    a(f"v_pk_add_f32 v[{AL}:{AL+1}], v[{AL}:{AL+1}], v[{AL+2}:{AL+3}]\nv_pk_add_f32 v[{AL+4}:{AL+5}], v[{AL+4}:{AL+5}], v[{AL+6}:{AL+7}]")
    a(pvx(2))
    a(f"v_pk_add_f32 v[{AL}:{AL+1}], v[{AL}:{AL+1}], v[{AL+8}:{AL+9}]\nv_pk_add_f32 v[{AL}:{AL+1}], v[{AL}:{AL+1}], v[{AL+4}:{AL+5}]")
    a(pvx(3))
    a(f"v_add_f32 v{T_}, v{AL}, v{AL+1}\nv_mov_b32 v{T1}, v{T_}")
    a(pvm(0))
    a(f"v_permlane32_swap_b32 v{T_}, v{T1}")
    a(pvm(2))
    a(f"v_add_f32 v{T_}, v{T_}, v{T1}\nv_mov_b32 v{T1}, v{T_}")
    a(pvm(1))
    a(f"v_permlane16_swap_b32 v{T_}, v{T1}")
    a(pvm(3))
    a(f"v_add_f32 v{T_}, v{T_}, v{T1}\nv_rcp_f32 v{T2}, v{T_}")
    X = AL
    for kk in range(2):
        for r in range(4): a(f"v_cndmask_b32 v{X+4*kk+r}, v{OD+4*kk+r}, v{OD+8+4*kk+r}, s[{C.S_HALF}:{C.S_HALF+1}]")
    for k in range(4): a(f"v_pk_mul_f32 v[{X+2*k}:{X+2*k+1}], v[{X+2*k}:{X+2*k+1}], v[{T2}:{T2+1}] op_sel_hi:[1,0]")
    OP = AL + 12
    for k in range(4): a(f"v_cvt_pk_bf16_f32 v{OP+k}, v{X+2*k}, v{X+2*k+1}")
    BP = AL + 16
    Lodd = a.label("odd"); Lpub = a.label("pub")
    def wo_phase(stores):
        post = lambda T: [f"v_pk_add_f32 v[{C.AO+4*T}:{C.AO+4*T+1}], v[{C.AO+4*T}:{C.AO+4*T+1}], v[{C.AO+4*T+2}:{C.AO+4*T+3}]",
                          f"v_cvt_pk_bf16_f32 v{BP+T}, v{C.AO+4*T}, v{C.AO+4*T+1}"] + ([f"v_bfi_b32 v{BP+T}, 1, s{C.S_S}, v{BP+T}"] if T % 2 == 0 else [])
        LAG = 4
        for T in range(10 + LAG):
            if T < 10: a(sm(C.AO + 4*T, OP, wo(T)))
            if T >= LAG:
                for x in post(T - LAG): a(x)
                if T - LAG in stores: a(stores[T - LAG])
    st4 = lambda b, so: f"buffer_store_dwordx4 v[{b}:{b+3}], v{C.BST}, s[4:7], s{so} offen sc1"
    st2 = lambda b, so: f"buffer_store_dwordx2 v[{b}:{b+1}], v{C.BST}, s[4:7], s{so} offen sc1"
    a(f"s_bitcmp1_b32 s{S_WAVE}, 0\ns_cbranch_scc1 {Lodd}")
    wo_phase({3: st4(BP, C.S_B1), 7: st4(BP+4, C.S_B2), 9: st2(BP+8, C.S_B3)})
    a(f"s_branch {Lpub}\n{Lodd}:")
    wo_phase({1: st2(BP, C.S_B1), 5: st4(BP+2, C.S_B2), 9: st4(BP+6, C.S_B3)})
    a(f"{Lpub}:")
    sp(a, 4)
    def kmvm_store():
        a(f"s_mul_i32 s{S_T0}, s{C.S_S}, {32*3072}\ns_add_u32 s{S_T0}, s{S_T0}, s{C.S_KMO}\ns_add_u32 s{S_T1}, s{S_T0}, {KM}\ns_add_u32 s{S_T0}, s{S_T0}, {VM}")
        a(f"buffer_store_dwordx4 v[{C.KXR}:{C.KXR+3}], v{C.KMA}, s[4:7], s{S_T1} offen sc1\nbuffer_store_dwordx4 v[{C.KXR+4}:{C.KXR+7}], v{C.KMA}, s[4:7], s{S_T1} offen offset:512 sc1")
        a(f"buffer_store_dwordx4 v[{C.VMR}:{C.VMR+3}], v{C.A16}, s[4:7], s{S_T0} offen sc1")
    Lw = a.label("w23"); Lw2 = a.label("w2"); Lown = a.label("own"); Lb3 = a.label("b3")
    a(f"s_cmp_lt_u32 s{S_WAVE}, 2\ns_cbranch_scc1 {Lw}")
    a(f"s_cmp_eq_u32 s{S_WAVE}, 2\ns_cbranch_scc1 {Lw2}")
    kmvm_store()
    a(f"{Lw2}:\ns_add_u32 s{S_T4}, s{C.S_S}, 2\ns_cmp_ge_u32 s{S_T4}, {NSEG-1}\ns_cbranch_scc1 {Lw}")
    prefetch_kv(None, None)
    a(f"{Lw}:")
    a(f"s_add_u32 s{C.S_S}, s{C.S_S}, 1")
    read_kv(C.S_S)
    for r in range(40): a(f"v_mov_b32 v{C.AO+r}, 0")
    mem_offsets()
    a(f"s_cmp_eq_u32 s{C.S_OWN}, 0\ns_cbranch_scc1 {Lb3}")
    if cfg.get("dB", 0): a(f"s_sleep {cfg['dB']}")
    Lb = a.label("bp"); Lbx = a.label("bpx")
    a(f"s_not_b32 s{S_T3}, s{C.S_S}\ns_mov_b32 s{S_SPIN}, 0\n{Lb}:")
    for L in range(6): a(f"buffer_load_dwordx4 v[{AL+4*L}:{AL+4*L+3}], v{C.BLD}, s[4:7], s{90+L} offen sc1")
    cnt(a, 10)
    spin_fail(a, Lbx)
    for L in range(6):
        b = AL + 4*L
        a(f"s_waitcnt vmcnt({5-L})")
        a(f"v_bitop3_b32 v{AL+24+(L&1)}, v{b}, v{b+2}, s{S_T3} bitop3:0x7e")
        if L == 1: a(f"v_or_b32 v{C.T}, v{AL+24}, v{AL+25}")
        elif L & 1: a(f"v_or3_b32 v{C.T}, v{C.T}, v{AL+24}, v{AL+25}")
        a(f"v_mfma_f32_16x16x32_bf16 v[{C.SD}:{C.SD+3}], v[{b}:{b+3}], v[{C.SEL}:{C.SEL+3}], {'0' if L == 0 else f'v[{C.SD}:{C.SD+3}]'}")
    a(f"v_and_b32 v{C.T}, 1, v{C.T}\nv_cmp_eq_u32 vcc, 1, v{C.T}\ns_cbranch_vccnz {Lb}")
    a(f"{Lbx}:\ns_waitcnt vmcnt(0)")
    sp(a, 5)
    S_ = C.SD
    a(f"s_cmp_lt_u32 s{C.S_MSIG}, 8\ns_cselect_b32 s{S_T0}, s{C.S_MEM}, s{C.S_MEMX}")
    a(f"v_permlane32_swap_b32 v{S_}, v{S_+1}\nv_permlane32_swap_b32 v{S_+2}, v{S_+3}\nv_add_f32 v{S_}, v{S_}, v{S_+1}\nv_add_f32 v{S_+2}, v{S_+2}, v{S_+3}")
    a(f"v_permlane16_swap_b32 v{S_}, v{S_+2}\nv_add_f32 v{S_}, v{S_}, v{S_+2}")
    a(f"v_mov_b32_dpp v{S_+1}, v{S_} row_shl:2 row_mask:0xf bank_mask:0xf\nv_cvt_pk_bf16_f32 v{S_}, v{S_}, v{S_+1}")
    a(f"buffer_store_dword v{S_}, v{C.MST}, s[4:7], s{S_T0} offen sc1")
    a(f"{Lb3}:")
    sp(a, 6)
    a("s_waitcnt lgkmcnt(0)\ns_barrier")
    if cfg.get("dC", 0): a(f"s_sleep {cfg['dC']}")
    a(f"s_branch {Lstep}")
    for sg in range(10):
        a(f"{Lcr[sg]}:\ns_waitcnt vmcnt(0)")
        cnt(a, 8)
        for k in range(sg, 10): a(cload(k))
        a(f"s_add_u32 s{S_SPIN}, s{S_SPIN}, 1\ns_cmp_le_u32 s{S_SPIN}, {SPIN_MAX}\ns_cbranch_scc1 {Lcc[sg]}")
        a(f"s_branch {Ldone}")
    a(f"{Lfinal}:")
    a(f"s_cmp_lg_u32 s{S_WAVE}, 3\ns_cbranch_scc1 {Ldone}\ns_waitcnt lgkmcnt(0)")
    kmvm_store()
    a(f"s_waitcnt vmcnt(0)\nv_mov_b32 v{C.T+1}, {NSEG}\nbuffer_store_dword v{C.T+1}, v{C.FLA}, s[4:7], 0 offen sc1")
    a(f"{Ldone}:")
    if cfg.get("sprof"):
        a(f"s_lshl_b32 s98, s{R}, 2\ns_add_u32 s98, s98, s{S_WAVE}\ns_lshl_b32 s98, s98, 6\ns_add_u32 s98, s98, {PROF + MB}\nv_mov_b32 v{C.T+1}, 0\ns_mov_b64 exec, 1")
        for i in range(16): a(f"v_mov_b32 v{C.T}, s{16+i}\nbuffer_store_dword v{C.T}, v{C.T+1}, s[4:7], s98 offen offset:{4*i}")
        a("s_mov_b64 exec, -1")
    stamp(a, 3, C.T)
```

```python
from gen_head import *
OOB = 0x70000000
import struct
def f32bits(x): return struct.unpack('<I', struct.pack('<f', x))[0]
class Eng:
    ACC = (16, 40)
    FR = 64
    NF = 8
    V_RA = 96
    V_DA = 100
    V_EA = 112
    V_FL = 120
    V_T = 122
    V_W = 128
    V_EP = 128
    S_SEG = 54; S_SOFF = 55; S_EOFF = 56; S_LDW = 57; S_LDR = 58; S_ENX = 59; S_EST = 60; S_NSEG = 61
    S_WA = 62; S_WB = 63; S_EO2 = 64; S_SC = 66

def wreg(i):
    return f"a[{4*i}:{4*i+3}]" if i < 64 else f"v[{Eng.V_W + 4*(i-64)}:{Eng.V_W + 4*(i-64) + 3}]"
def wreg2(i, h):
    b = 4*i + 2*h
    return f"a[{b}:{b+1}]" if i < 64 else f"v[{Eng.V_W + b - 256}:{Eng.V_W + b - 255}]"

def stage_weights(a, NU, parts, reads, ring, lds0=0, early=None):
    ub = sum(p[4] for p in parts)*4096
    per = sum(p[4] for p in parts)
    def dma(u):
        for (sr, v, sb, soff, n, lo) in parts:
            for k in range(n):
                a(f"s_mul_i32 s{S_T2}, s{S_WAVE}, {n*1024}\ns_add_u32 m0, s{S_T2}, {lds0 + (u % ring)*ub + lo + k*1024}\ns_add_u32 s{S_T1}, s{sb}, {soff(u, k)}")
                a(f"buffer_load_dwordx4 v{v}, s[{sr}:{sr+3}], s{S_T1} offen nt lds")
    n0 = min(NU, ring - 1)
    q = []
    for u in range(n0):
        dma(u); q += [u]*per
    if early: q += [None]*early(a)
    issued = n0
    for u in range(NU):
        last = max(i for i, x in enumerate(q) if x == u)
        assert len(q) - 1 - last <= 63
        a(f"s_waitcnt vmcnt({len(q) - 1 - last}) lgkmcnt(0)\ns_barrier")
        if issued < NU:
            dma(issued); q += [issued]*per; issued += 1
        for t in reads(u, lds0 + (u % ring)*ub): a(t)
    a("s_waitcnt lgkmcnt(0)")

def lane_rows(a, vreg, lanes_per_row_log2, row_stride):
    t = Eng.V_T; k = lanes_per_row_log2
    a(f"v_lshrrev_b32 v{t}, {k}, v{V_LANE}\nv_mul_u32_u24 v{t}, {row_stride}, v{t}\nv_and_b32 v{vreg}, {(1 << k) - 1}, v{V_LANE}\nv_lshl_add_u32 v{vreg}, v{vreg}, 4, v{t}")

def tr_addr(a, vreg, row_bytes_log2, c4_shift, s_add):
    t = Eng.V_T
    a(f"v_lshrrev_b32 v{t}, 4, v{V_LANE}\nv_lshlrev_b32 v{t}, 3, v{t}\nv_bfe_u32 v{t+1}, v{V_LANE}, 2, 2\nv_add_u32 v{t}, v{t}, v{t+1}\nv_and_b32 v{t+1}, 3, v{V_LANE}")
    a(f"v_lshlrev_b32 v{t}, {row_bytes_log2}, v{t}\nv_lshl_add_u32 v{t}, v{t+1}, {c4_shift}, v{t}\nv_add_u32 v{vreg}, s{s_add}, v{t}")

def stream_rowmajor(a, perm=False):
    E_ = Eng; t = E_.V_T
    for k in range(10):
        a(f"s_mul_i32 s{S_T0}, s{S_WAVE}, 640\ns_add_u32 s{S_T0}, s{S_T0}, {k*64}\nv_add_u32 v{t}, s{S_T0}, v{V_LANE}")
        a(f"v_mul_u32_u24 v{t+1}, 52429, v{t}\nv_lshrrev_b32 v{t+1}, 22, v{t+1}")
        a(f"v_mul_u32_u24 v{t+2}, 80, v{t+1}\nv_sub_u32 v{t+2}, v{t}, v{t+2}")
        if perm: a(f"v_lshrrev_b32 v{t+3}, 4, v{t+1}\nv_lshlrev_b32 v{t+3}, 3, v{t+3}\nv_and_or_b32 v{t+3}, v{t+1}, 7, v{t+3}")
        else: a(f"v_and_b32 v{t+3}, 15, v{t+1}")
        a(f"v_xor_b32 v{t+2}, v{t+2}, v{t+3}")
        a(f"v_mul_u32_u24 v{t+1}, 1280, v{t+1}\nv_lshl_add_u32 v{E_.V_DA+k}, v{t+2}, 4, v{t+1}")
    a(f"v_and_b32 v{t}, 15, v{V_LANE}\nv_lshrrev_b32 v{t+1}, 4, v{V_LANE}\nv_xor_b32 v{t+1}, v{t+1}, v{t}")
    if perm: a(f"v_lshrrev_b32 v{t+2}, 3, v{t}\nv_lshlrev_b32 v{t+2}, 4, v{t+2}\nv_and_or_b32 v{t}, v{t}, 7, v{t+2}")
    a(f"v_mul_u32_u24 v{t}, 1280, v{t}")
    for b in range(4):
        a(f"v_xor_b32 v{t+2}, {4*b}, v{t+1}\nv_lshl_add_u32 v{E_.V_RA+b}, v{t+2}, 4, v{t}")

def stream_linear(a, ND):
    E_ = Eng; t = E_.V_T
    a(f"s_mul_i32 s{S_T0}, s{S_WAVE}, {ND*1024}\nv_lshlrev_b32 v{E_.V_DA}, 4, v{V_LANE}\nv_add_u32 v{E_.V_DA}, s{S_T0}, v{E_.V_DA}")
    a(f"v_lshrrev_b32 v{t}, 4, v{V_LANE}\nv_and_b32 v{t+1}, 15, v{V_LANE}\nv_lshlrev_b32 v{t}, 9, v{t}\nv_lshl_add_u32 v{E_.V_RA}, v{t+1}, 4, v{t}")

def flag_addr(a, vreg, off_sreg):
    a(f"v_mov_b32 v{vreg}, s{off_sreg}\nv_mov_b32 v{Eng.V_T}, {OOB}\nv_cmp_eq_u32 vcc, 0, v0\nv_cndmask_b32 v{vreg}, v{Eng.V_T}, v{vreg}, vcc")

def engine(a, name, NK, NT, orient, KP, srd_x, slot_stride, mode, epi, nst, xflags="", pre_dma=None, flag=None, mid=None, nmid=0, staging=None, epi_block=None):
    E_ = Eng
    SLOT = NK*2048
    ND = NK // 2
    PD = E_.NF
    NS = 2*NK
    assert NS % E_.NF == 0
    lin = mode == 'lin'
    nra = 1 if lin else 4
    toff = {'row': 20480, 'perm': 10240, 'lin': 256}[mode]
    def dma(k):
        r = [f"s_add_u32 m0, s{E_.S_LDW}, {k*1024}"]
        if lin:
            r.append(f"s_add_u32 s{S_T1}, s{E_.S_SOFF}, {k*1024}")
            r.append(f"buffer_load_dwordx4 v{E_.V_DA}, s[{srd_x}:{srd_x+3}], s{S_T1} offen {xflags} lds")
        else:
            r.append("s_nop 0")
            r.append(f"buffer_load_dwordx4 v{E_.V_DA+k}, s[{srd_x}:{srd_x+3}], s{E_.S_SOFF} offen {xflags} lds")
        return r
    def adv_w(p):
        return [f"s_add_u32 s{E_.S_SOFF}, s{E_.S_SOFF}, {slot_stride(p)}",
                f"s_add_u32 s{E_.S_LDW}, s{E_.S_LDW}, {SLOT}",
                f"s_cmp_ge_u32 s{E_.S_LDW}, {3*SLOT}",
                f"s_cselect_b32 s{S_T1}, {3*SLOT}, 0",
                f"s_sub_u32 s{E_.S_LDW}, s{E_.S_LDW}, s{S_T1}"]
    def rd(g):
        u, t = g // 2, g % 2
        f = E_.FR + 4*(g % E_.NF)
        if lin: return f"ds_read_b128 v[{f}:{f+3}], v{E_.V_RA} offset:{u*2048 + t*toff}"
        return f"ds_read_b128 v[{f}:{f+3}], v{E_.V_RA + u % 4} offset:{(u // 4)*256 + t*toff}"
    def mf(acc, kp, g):
        u, t = g // 2, g % 2
        f = E_.FR + 4*(g % E_.NF)
        r = []
        for tau in range(NT):
            W = wreg((kp*NK + u)*NT + tau); X = f"v[{f}:{f+3}]"
            A, B = (W, X) if orient[tau] == 'A' else (X, W)
            d = acc + 4*(2*tau + t)
            C = "0" if (u == 0 and kp == 0) else f"v[{d}:{d+3}]"
            r.append(f"v_mfma_f32_16x16x32_bf16 v[{d}:{d+3}], {A}, {B}, {C}")
        return r
    def prime(a):
        a(f"s_mul_i32 s{E_.S_LDW}, s{S_WAVE}, {ND*1024}\ns_mov_b32 s{E_.S_LDR}, 0\ns_mov_b32 s{E_.S_EOFF}, {OOB}\ns_mov_b32 s{E_.S_SEG}, -2")
        for p in range(2):
            if pre_dma: pre_dma(a, p % KP)
            for k in range(ND):
                for t in dma(k): a(t)
            for t in adv_w(p % KP): a(t)
            a(f"s_add_u32 s{E_.S_SEG}, s{E_.S_SEG}, 1")
        return 2*ND
    if staging is not None:
        staging(prime)
        a("s_waitcnt vmcnt(0)\ns_barrier")
    else:
        a("s_barrier")
        prime(a)
        a(f"s_waitcnt vmcnt({ND})\ns_barrier")
    for g in range(PD): a(rd(g))
    Lloop = a.label(name + "_loop"); Lend = a.label(name + "_end")
    NP = 2*KP
    def nops(p): return ND + (nst if p % KP == 0 else 0) + (nmid if p % KP == KP - 1 else 0) + (1 if (flag is not None and p % KP == 0) else 0)
    BAR = NS - PD + 1
    a(f"{Lloop}:")
    for p in range(NP):
        kp = p % KP; acc = E_.ACC[p // KP]
        fill_at = {g: [] for g in range(NS)}
        dsp = max(1, (BAR - 2) // ND)
        for k in range(ND): fill_at[k*dsp] += dma(k)
        fill_at[(ND-1)*dsp] += adv_w((p + 2) % KP)
        ep = []
        if kp == 0:
            ep += epi(E_.ACC[1 - p // KP]) + [f"s_mov_b32 s{E_.S_EOFF}, s{E_.S_ENX}", f"s_add_u32 s{E_.S_ENX}, s{E_.S_ENX}, s{E_.S_EST}"]
        if mid and kp == KP - 1: ep += mid()
        e0 = 3
        nsl = BAR - e0
        for i, t in enumerate(ep): fill_at[e0 + i*nsl // len(ep)].append(t)
        if epi_block and kp == 0: epi_block(a, E_.ACC[1 - p // KP], False)
        if pre_dma: pre_dma(a, (p + 2) % KP)
        for g in range(NS):
            if g <= BAR: a(f"s_waitcnt lgkmcnt({min(g + PD, NS) - g - 1})")
            m = mf(acc, kp, g)
            a(m[0])
            if g + PD < NS and NT == 1: a(rd(g + PD))
            fl = fill_at[g]
            for i in range(1, NT):
                n = len(fl)*i // NT - len(fl)*(i-1) // NT
                for t in fl[len(fl)*(i-1)//NT: len(fl)*i//NT]: a(t)
                a(m[i])
            if g + PD < NS: a(rd(g + PD))
            elif g > BAR: a(rd(g - (NS - PD)))
            for t in fl[len(fl)*(NT-1)//NT:]: a(t)
            if g == BAR:
                a(f"s_add_u32 s{E_.S_SEG}, s{E_.S_SEG}, 1")
                a(f"s_add_u32 s{E_.S_LDR}, s{E_.S_LDR}, {SLOT}\ns_cmp_ge_u32 s{E_.S_LDR}, {3*SLOT}\ns_mov_b32 s{S_T1}, {SLOT}\ns_cselect_b32 s{S_T1}, {-2*SLOT}, s{S_T1}\ns_cselect_b32 s{E_.S_LDR}, 0, s{E_.S_LDR}")
                for b in range(nra): a(f"v_add_u32 v{E_.V_RA+b}, s{S_T1}, v{E_.V_RA+b}")
                if p == NP - 1: a(f"s_cmp_ge_u32 s{E_.S_SEG}, s{E_.S_NSEG}\ns_cbranch_scc1 {Lend}")
                a(f"s_waitcnt vmcnt({nops(p)}) lgkmcnt(0)")
                a("s_barrier")
                a(rd(0)); a(rd(1))
                if flag is not None and (p + 1) % KP == 0:
                    if KP == 1: a(f"s_sub_i32 s{S_T1}, s{E_.S_SEG}, 2\ns_max_i32 s{S_T1}, s{S_T1}, 0")
                    else: a(f"s_lshr_b32 s{S_T1}, s{E_.S_SEG}, 1\ns_sub_i32 s{S_T1}, s{S_T1}, 1")
                    a(f"v_mov_b32 v{E_.V_T}, s{S_T1}\nbuffer_store_dword v{E_.V_T}, v{flag}, s[4:7], 0 offen sc1")
    a(f"s_branch {Lloop}")
    a(f"{Lend}:")
    a("s_waitcnt lgkmcnt(0)")
    for g in range(BAR + 1, NS):
        for t in mf(E_.ACC[1], KP - 1, g): a(t)
    for t in epi(E_.ACC[1]): a(t)
    if epi_block: epi_block(a, E_.ACC[1], True)
    a("s_waitcnt vmcnt(0)\ns_barrier")
    if flag is not None:
        a(f"s_lshr_b32 s{S_T1}, s{E_.S_NSEG}, {KP-1}\nv_mov_b32 v{E_.V_T}, s{S_T1}\nbuffer_store_dword v{E_.V_T}, v{flag}, s[4:7], 0 offen sc1")

def cvt4(dst, src):
    return [f"v_cvt_pk_bf16_f32 v{dst}, v{src}, v{src+1}", f"v_cvt_pk_bf16_f32 v{dst+1}, v{src+2}, v{src+3}"]

def role_T1(a, cfg):
    E_ = Eng; t = E_.V_T
    c = E**-0.5 * math.log2(math.e)
    a(f"s_cmp_lt_u32 s{S_WAVE}, 2\ns_mov_b32 s{S_T0}, {f32bits(c)}\ns_cselect_b32 s{E_.S_SC}, 1.0, s{S_T0}\ns_mov_b32 s{E_.S_SC+1}, s{E_.S_SC}")
    a(f"s_mov_b32 s{S_T0}, {QX}\ns_cselect_b32 s{S_T3}, {KX}, s{S_T0}")
    srd(a, 8, P_WK, D*H*E*2); srd(a, 12, P_WQ, D*H*E*2); srd(a, 68, P_WV, D*H*E*2); srd(a, 72, P_X, S*D*2)
    a(f"s_mul_i32 s{S_T0}, s{S_WAVE}, {8*12288}\ns_lshl_b32 s{E_.S_WA}, s{S_ROLE}, 7\ns_add_u32 s{E_.S_WA}, s{E_.S_WA}, s{S_T0}")
    lane_rows(a, E_.V_EP, 3, 12288)
    a(f"s_lshr_b32 s{S_T0}, s{S_WAVE}, 1\ns_lshl_b32 s{S_T0}, s{S_T0}, 12\ns_and_b32 s{S_T1}, s{S_WAVE}, 1\ns_lshl_b32 s{S_T1}, s{S_T1}, 6\ns_add_u32 s{S_T0}, s{S_T0}, s{S_T1}\ns_add_u32 s{S_T0}, s{S_T0}, 81920")
    tr_addr(a, E_.V_EP+1, 7, 4, S_T0)
    a(f"s_lshl_b32 s{S_T0}, s{S_WAVE}, 5\ns_add_u32 s{S_T0}, s{S_T0}, {81920 + 8192}")
    tr_addr(a, E_.V_EP+2, 7, 3, S_T0)
    a(f"s_lshl_b32 s{E_.S_ENX}, s{S_ROLE}, 12\ns_mov_b32 s{E_.S_EST}, {32*12288}\ns_mov_b32 s{E_.S_SOFF}, 0\ns_mov_b32 s{E_.S_NSEG}, {NSEG}")
    a(f"s_and_b32 s{S_T0}, s{S_WAVE}, 1\ns_lshl_b32 s{S_T0}, s{S_T0}, 11\ns_add_u32 s{S_T3}, s{S_T3}, s{S_T0}")
    a(f"v_lshrrev_b32 v{t}, 4, v{V_LANE}\nv_and_b32 v{t+1}, 15, v{V_LANE}\nv_lshlrev_b32 v{t}, 9, v{t}\nv_lshl_add_u32 v{t}, v{t+1}, 4, v{t}\nv_add_u32 v{E_.V_EA}, s{S_T3}, v{t}")
    a(f"s_lshl_b32 s{S_T0}, s{S_WAVE}, 10\ns_add_u32 s{S_T0}, s{S_T0}, {VX}\nv_lshlrev_b32 v{t}, 4, v{V_LANE}\nv_add_u32 v{E_.V_EA+1}, s{S_T0}, v{t}")
    a(f"s_lshl_b32 s{S_T0}, s{S_ROLE}, 7\ns_add_u32 s{S_T0}, s{S_T0}, {F_T1}")
    flag_addr(a, E_.V_FL, S_T0)
    stream_rowmajor(a)
    dbg_add(a, DBG_INIT, t)
    def reads(u, base):
        r = []; o = base - 81920
        for tau in range(2):
            for m in range(2): r.append(f"ds_read_b64_tr_b16 {wreg2(u*3 + tau, m)}, v{E_.V_EP+1} offset:{o + tau*8 + m*512}")
        for m in range(2): r.append(f"ds_read_b64_tr_b16 {wreg2(u*3 + 2, m)}, v{E_.V_EP+2} offset:{o + m*512}")
        return r
    def staging(prime):
        so = lambda u, k: 32*u*12288
        stage_weights(a, 20, [(8, E_.V_EP, E_.S_WA, so, 1, 0), (12, E_.V_EP, E_.S_WA, so, 1, 4096), (68, E_.V_EP, E_.S_WA, so, 1, 8192)],
                      reads, 5, lds0=81920, early=prime)
        stamp(a, 1)
        poll_dbg_ge(a, DBG_INIT, 160, t)
        stamp(a, 2)
    def epi(acc):
        r = []; P = E_.V_EP
        for tt in range(2):
            for tau in range(2):
                d = acc + 4*(2*tau + tt)
                for i in range(2): r.append(f"v_pk_mul_f32 v[{d+2*i}:{d+2*i+1}], v[{d+2*i}:{d+2*i+1}], s[{E_.S_SC}:{E_.S_SC+1}]")
                r += cvt4(P + 4*tt + 2*tau, d)
            r.append(f"buffer_store_dwordx4 v[{P+4*tt}:{P+4*tt+3}], v{E_.V_EA}, s[4:7], s{E_.S_EOFF} offen offset:{256*tt} sc1")
        r += cvt4(P + 8, acc + 16) + cvt4(P + 10, acc + 20)
        r.append(f"buffer_store_dwordx4 v[{P+8}:{P+11}], v{E_.V_EA+1}, s[4:7], s{E_.S_EOFF} offen sc1")
        return r
    engine(a, "t1", 20, 3, "AAB", 1, 72, lambda p: 40960, 'row', epi, 3, flag=E_.V_FL, staging=staging)
    stamp(a, 3)
```

```python
import sys, math
sys.path.insert(0, "gen")
from asmlib import Asm
from layout import *

SPIN_MAX = 20000
P_X, P_MEM0, P_WQ, P_WK, P_WV, P_WO = 16, 18, 20, 22, 24, 26
P_WQKV, P_WOB, P_GATE, P_OUT, P_DBG, P_WS = 32, 34, 36, 38, 40, 42
SRD_WS = 4
SRD_A = 8
SRD_B = 12
S_WAVE = 44
S_ROLE = 45
S_XCC = 46
S_RANK = 47
S_T0, S_T1, S_T2, S_T3, S_T4 = 48, 49, 50, 51, 52
S_SPIN = 53
V_LANE = 1

def srd(a, base, ptr, nbytes):
    a(f"s_mov_b32 s{base}, s{ptr}\ns_mov_b32 s{base+1}, s{ptr+1}\ns_mov_b32 s{base+2}, {nbytes}\ns_mov_b32 s{base+3}, 0x20000")

def poll_dbg_ge(a, dword, val, vt=2):
    L = a.label("pd"); Lx = a.label("pdx")
    a(f"s_mov_b32 s{S_SPIN}, 0\nv_mov_b32 v{vt}, {dword*4}")
    a(f"{L}:")
    a(f"global_load_dword v{vt+1}, v{vt}, s[{P_DBG}:{P_DBG+1}] sc1")
    a(f"s_add_u32 s{S_SPIN}, s{S_SPIN}, 1\ns_cmp_gt_u32 s{S_SPIN}, {SPIN_MAX}\ns_cbranch_scc1 {Lx}")
    a(f"s_waitcnt vmcnt(0)\nv_readfirstlane_b32 s{S_T0}, v{vt+1}")
    a(f"s_cmp_ge_u32 s{S_T0}, {val}\ns_cbranch_scc1 {Lx}\ns_sleep 4\ns_branch {L}")
    a(f"{Lx}:\ns_waitcnt vmcnt(0)")

def dbg_add(a, dword, vt=2):
    L = a.label("da")
    a("s_waitcnt vmcnt(0)\ns_barrier")
    a(f"s_cmp_lg_u32 s{S_WAVE}, 0\ns_cbranch_scc1 {L}")
    a(f"v_mov_b32 v{vt}, {dword*4}\nv_mov_b32 v{vt+1}, 1\ns_mov_b64 exec, 1")
    a(f"global_atomic_add v{vt}, v{vt+1}, s[{P_DBG}:{P_DBG+1}] sc1")
    a("s_mov_b64 exec, -1")
    a(f"{L}:")

def fill(a, start_sreg, n16, val, vt=2):
    a(f"v_lshlrev_b32 v{vt}, 4, v0")
    for i in range(4): a(f"v_mov_b32 v{vt+2+i}, {val}")
    a(f"s_mov_b32 s{S_T1}, s{start_sreg}")
    for i in range(n16):
        a(f"buffer_store_dwordx4 v[{vt+2}:{vt+5}], v{vt}, s[4:7], s{S_T1} offen sc1")
        if i + 1 < n16: a(f"s_add_u32 s{S_T1}, s{S_T1}, 4096")

PROF = 240*MB
CFG = {}
def stamp(a, idx, vt=122):
    if not CFG.get("prof"): return
    L = a.label("st")
    a(f"s_cmp_lg_u32 s{S_WAVE}, 0\ns_cbranch_scc1 {L}")
    a(f"s_memrealtime s[98:99]\ns_memtime s[96:97]\ns_lshl_b32 s100, s{S_XCC}, 5\ns_add_u32 s100, s100, s{S_RANK}\ns_lshl_b32 s100, s100, 8\ns_add_u32 s100, s100, {PROF + idx*4}")
    a(f"s_waitcnt lgkmcnt(0)\nv_mov_b32 v{vt}, s98\nv_mov_b32 v{vt+1}, s100\ns_mov_b64 exec, 1")
    a(f"buffer_store_dword v{vt}, v{vt+1}, s[4:7], 0 offen\nv_mov_b32 v{vt+2}, s96\nbuffer_store_dword v{vt+2}, v{vt+1}, s[4:7], 0 offen offset:128\ns_mov_b64 exec, -1")
    a(f"{L}:")

def probe(a, region_sreg, dst_sreg):
    t = 8
    L = a.label("prb")
    a(f"s_cmp_lg_u32 s{S_WAVE}, 0\ns_cbranch_scc1 {L}")
    a(f"s_waitcnt vmcnt(0)\ns_mov_b64 exec, 1\nv_mov_b32 v{t}, 0\ns_mov_b32 s70, -1\ns_mov_b32 s71, -1")
    for rep in range(4):
        for p in range(2):
            a(f"s_add_u32 s{S_T1}, s{region_sreg}, {2*MB - 16384 + p*8192 + rep*1024}")
            a("s_memtime s[72:73]\ns_waitcnt lgkmcnt(0)")
            a(f"buffer_store_dword v{t}, v{t}, s[4:7], s{S_T1} offen sc1\ns_waitcnt vmcnt(0)")
            a(f"buffer_load_dword v{t+1}, v{t}, s[4:7], s{S_T1} offen sc1\ns_waitcnt vmcnt(0)")
            a(f"s_memtime s[74:75]\ns_waitcnt lgkmcnt(0)\ns_sub_u32 s74, s74, s72\ns_min_u32 s{70+p}, s{70+p}, s74")
    a(f"s_cmp_lt_u32 s71, s70\ns_cselect_b32 s{S_T1}, 1, 0\nv_mov_b32 v{t+1}, s{S_T1}")
    a(f"buffer_store_dword v{t+1}, v{t}, s[4:7], s{dst_sreg} offen sc1")
    if CFG.get("prof"):
        a(f"v_mov_b32 v{t+1}, s70\nbuffer_store_dword v{t+1}, v{t}, s[4:7], s{dst_sreg} offen offset:4 sc1\nv_mov_b32 v{t+2}, s71\nbuffer_store_dword v{t+2}, v{t}, s[4:7], s{dst_sreg} offen offset:8 sc1")
    a(f"s_mov_b64 exec, -1\n{L}:")

def prologue(a, cfg):
    a("s_cmp_ge_u32 s2, 256\ns_cbranch_scc1 L_exit")
    a("s_load_dwordx16 s[16:31], s[0:1], 0\ns_load_dwordx8 s[32:39], s[0:1], 64\ns_load_dwordx4 s[40:43], s[0:1], 96")
    a(f"s_getreg_b32 s{S_XCC}, hwreg(HW_REG_XCC_ID, 0, 4)\ns_and_b32 s{S_XCC}, s{S_XCC}, 7")
    a(f"v_and_b32 v{V_LANE}, 63, v0\nv_lshrrev_b32 v2, 6, v0\ns_nop 0\nv_readfirstlane_b32 s{S_WAVE}, v2")
    a("s_waitcnt lgkmcnt(0)")
    srd(a, SRD_WS, P_WS, WS_BYTES)
    a(f"s_cmp_lg_u32 s{S_WAVE}, 0\ns_cbranch_scc1 L_rank_w")
    a(f"s_and_b32 s{S_T0}, s{S_XCC}, 1\ns_lshl_b32 s{S_T0}, s{S_T0}, 7\ns_lshr_b32 s{S_T1}, s{S_XCC}, 1\ns_lshl_b32 s{S_T1}, s{S_T1}, 2\ns_add_u32 s{S_T0}, s{S_T0}, s{S_T1}")
    a(f"v_mov_b32 v2, s{S_T0}\nv_mov_b32 v3, 1\nv_mov_b32 v5, 0\ns_mov_b64 exec, 1")
    a(f"global_atomic_add v4, v2, v3, s[{P_DBG}:{P_DBG+1}] sc0 sc1")
    a("s_waitcnt vmcnt(0)\nds_write_b32 v5, v4\ns_mov_b64 exec, -1\ns_waitcnt lgkmcnt(0)")
    a("L_rank_w:\ns_barrier\nv_mov_b32 v5, 0\nds_read_b32 v4, v5\ns_waitcnt lgkmcnt(0)")
    a(f"v_readfirstlane_b32 s{S_RANK}, v4\ns_barrier")
    a(f"s_cmp_lt_u32 s{S_RANK}, 32\ns_cbranch_scc1 L_slot_ok")
    a(f"s_mov_b32 s{S_SPIN}, 0")
    a(f"v_and_b32 v2, 1, v{V_LANE}\nv_lshlrev_b32 v2, 7, v2\nv_lshrrev_b32 v3, 1, v{V_LANE}\nv_and_b32 v3, 3, v3\nv_lshl_add_u32 v2, v3, 2, v2")
    a("L_ovf:")
    a(f"global_load_dword v3, v2, s[{P_DBG}:{P_DBG+1}] sc1\ns_waitcnt vmcnt(0)")
    a(f"s_mov_b32 s{S_T0}, 0")
    for x in range(8):
        a(f"v_readlane_b32 s{60+x}, v3, {x}\ns_add_u32 s{S_T0}, s{S_T0}, s{60+x}")
    a(f"s_add_u32 s{S_SPIN}, s{S_SPIN}, 1\ns_cmp_gt_u32 s{S_SPIN}, {SPIN_MAX}\ns_cbranch_scc1 L_exit")
    a(f"s_cmp_lt_u32 s{S_T0}, 256\ns_cbranch_scc1 L_ovf")
    a(f"s_sub_u32 s{S_T0}, s{S_RANK}, 32")
    for x in range(7):
        a(f"s_max_u32 s{S_T1}, s{60+x}, 32\ns_sub_u32 s{S_T1}, s{S_T1}, 32\ns_cmp_gt_u32 s{S_XCC}, {x}\ns_cselect_b32 s{S_T1}, s{S_T1}, 0\ns_add_u32 s{S_T0}, s{S_T0}, s{S_T1}")
    for x in range(8):
        Ln = a.label("ov")
        a(f"s_min_u32 s{S_T1}, s{60+x}, 32\ns_sub_u32 s{S_T2}, 32, s{S_T1}")
        a(f"s_cmp_ge_u32 s{S_T0}, s{S_T2}\ns_cbranch_scc1 {Ln}")
        a(f"s_mov_b32 s{S_XCC}, {x}\ns_add_u32 s{S_RANK}, s{S_T1}, s{S_T0}\ns_branch L_slot_ok")
        a(f"{Ln}:\ns_sub_u32 s{S_T0}, s{S_T0}, s{S_T2}")
    a("s_branch L_exit")
    a("L_slot_ok:")
    stamp(a, 0)
    a(f"s_cmp_ge_u32 s{S_XCC}, 4\ns_cbranch_scc1 L_hi")
    a(f"s_cmp_ge_u32 s{S_RANK}, 24\ns_cbranch_scc1 L_lo_bulk")
    a(f"s_mul_i32 s{S_ROLE}, s{S_XCC}, 24\ns_add_u32 s{S_ROLE}, s{S_ROLE}, s{S_RANK}\ns_branch L_chain")
    lo_base, hi_base = (96, 128) if cfg.get("swap", 1) else (128, 96)
    a(f"L_lo_bulk:\ns_lshl_b32 s{S_ROLE}, s{S_XCC}, 3\ns_add_u32 s{S_ROLE}, s{S_ROLE}, s{S_RANK}\ns_add_u32 s{S_ROLE}, s{S_ROLE}, {lo_base - 24}\ns_branch L_bulk")
    a(f"L_hi:\ns_sub_u32 s{S_T1}, s{S_XCC}, 4\ns_lshl_b32 s{S_T0}, s{S_RANK}, 2\ns_add_u32 s{S_ROLE}, s{S_T1}, s{S_T0}")
    a(f"s_cmp_lt_u32 s{S_RANK}, 24\ns_cbranch_scc1 L_bulk\ns_lshl_b32 s{S_ROLE}, s{S_T1}, 3\ns_add_u32 s{S_ROLE}, s{S_ROLE}, s{S_RANK}\ns_add_u32 s{S_ROLE}, s{S_ROLE}, {hi_base - 24}")
    a("L_bulk:")
    a(f"s_mul_i32 s{S_T0}, s{S_ROLE}, 12288\ns_add_u32 s{S_T0}, s{S_T0}, {R_B0}")
    fill(a, S_T0, 3, -1)
    a(f"s_lshl_b32 s{S_T0}, s{S_ROLE}, 13\ns_add_u32 s{S_T0}, s{S_T0}, {R_MEM}")
    fill(a, S_T0, 2, -1)
    Lz = a.label("z"); Lz2 = a.label("z2")
    a(f"s_cmp_ge_u32 s{S_ROLE}, 66\ns_cbranch_scc1 {Lz}")
    a(f"s_lshl_b32 s{S_T0}, s{S_ROLE}, 12\ns_cmp_lt_u32 s{S_ROLE}, 18\ns_cbranch_scc1 {Lz2}\ns_add_u32 s{S_T0}, s{S_T0}, {ABUF - 18*4096}\n{Lz2}:")
    fill(a, S_T0, 1, 0)
    a(f"{Lz}:")
    Lm = a.label("m0"); Lm2 = a.label("m02")
    a(f"s_and_b32 s{S_T0}, s{S_ROLE}, 0x7e\ns_cmp_lg_u32 s{S_T0}, 0\ns_cbranch_scc1 {Lm}")
    a("s_waitcnt vmcnt(0)\ns_barrier")
    srd(a, SRD_A, P_MEM0, M*D*2)
    a(f"s_lshr_b32 s{S_T2}, s{S_ROLE}, 7")
    a(f"s_lshl_b32 s{S_T3}, s{S_ROLE}, 13\ns_add_u32 s{S_T3}, s{S_T3}, {R_MEM}")
    a(f"s_mov_b32 s{S_T4}, 0")
    a(f"{Lm2}:")
    a("v_and_b32 v2, 3, v0\nv_lshrrev_b32 v3, 2, v0")
    a("v_lshrrev_b32 v4, 4, v3\nv_lshl_add_u32 v2, v4, 2, v2")
    a("v_bfe_u32 v4, v3, 1, 1\nv_lshl_add_u32 v2, v4, 5, v2")
    a("v_bfe_u32 v4, v3, 2, 2\nv_and_b32 v5, 1, v3\nv_lshl_add_u32 v4, v4, 1, v5")
    a("v_mul_u32_u24 v4, 640, v4\nv_add_u32 v2, v2, v4\nv_lshlrev_b32 v2, 1, v2")
    a(f"s_lshl_b32 s{S_T0}, s{S_T2}, 3\ns_add_u32 s{S_T0}, s{S_T0}, s{S_T4}\ns_lshl_b32 s{S_T0}, s{S_T0}, 7")
    a(f"buffer_load_ushort v6, v2, s[8:11], s{S_T0} offen\nbuffer_load_ushort v7, v2, s[8:11], s{S_T0} offen offset:32")
    a(f"v_lshlrev_b32 v3, 2, v0\ns_lshl_b32 s{S_T1}, s{S_T4}, 10\ns_add_u32 s{S_T1}, s{S_T1}, s{S_T3}")
    a("s_waitcnt vmcnt(0)\nv_lshl_or_b32 v6, v7, 16, v6")
    a(f"buffer_store_dword v6, v3, s[4:7], s{S_T1} offen sc1")
    a(f"s_add_u32 s{S_T4}, s{S_T4}, 1\ns_cmp_eq_u32 s{S_T2}, 0\ns_cselect_b32 s{S_T0}, 8, 2\ns_cmp_lt_u32 s{S_T4}, s{S_T0}\ns_cbranch_scc1 {Lm2}")
    a(f"{Lm}:")
    Lnp = a.label("npb")
    a(f"s_cmp_lg_u32 s{S_XCC}, 3\ns_cbranch_scc1 {Lnp}\ns_sub_u32 s{S_T0}, s{S_RANK}, 30\ns_cmp_ge_u32 s{S_T0}, 2\ns_cbranch_scc1 {Lnp}")
    a(f"s_lshl_b32 s{S_T3}, s{S_T0}, 21\ns_add_u32 s{S_T3}, s{S_T3}, {R_MEM}\ns_lshl_b32 s{S_T4}, s{S_T0}, 7\ns_add_u32 s{S_T4}, s{S_T4}, {F_PAR}")
    probe(a, S_T3, S_T4)
    a(f"{Lnp}:")
    a(f"s_cmp_ge_u32 s{S_ROLE}, 128\ns_cbranch_scc1 L_gc")
    a(f"s_cmp_ge_u32 s{S_ROLE}, 96\ns_cbranch_scc1 L_gb")
    a("s_branch L_g1")
```

```python
from gen_chain import *

def gate(a):
    t = 8
    srd(a, 8, P_X, S*D*2); srd(a, 12, P_GATE, D*2)
    a(f"v_and_b32 v2, 15, v{V_LANE}\nv_mul_u32_u24 v2, 80, v2\nv_lshrrev_b32 v3, 4, v{V_LANE}\nv_mul_u32_u24 v4, 1280, v3\nv_add_u32 v4, v4, v2")
    for k in range(5): a(f"buffer_load_dwordx4 v[{8+4*k}:{11+4*k}], v2, s[12:15], 0 offen offset:{16*k}")
    a(f"s_lshl_b32 s{S_T3}, s{S_T3}, 8\ns_lshl_b32 s{S_T0}, s{S_WAVE}, 6\ns_add_u32 s{S_T3}, s{S_T3}, s{S_T0}")
    a(f"v_lshlrev_b32 v5, 3, v3\nv_mov_b32 v6, {OOB}\nv_and_b32 v7, 15, v{V_LANE}\nv_cmp_eq_u32 vcc, 0, v7\nv_cndmask_b32 v5, v6, v5, vcc")
    a("s_waitcnt vmcnt(0)")
    for k in range(20): a(f"v_lshlrev_b32 v{32+2*k}, 16, v{8+k}\nv_and_b32 v{33+2*k}, 0xffff0000, v{8+k}")
    L = a.label("gate")
    a(f"s_mov_b32 s{S_T4}, 0\n{L}:")
    a(f"s_add_u32 s{S_T0}, s{S_T3}, s{S_T4}\ns_mul_i32 s{S_T1}, s{S_T0}, 1280\ns_lshl_b32 s{S_T0}, s{S_T0}, 3\ns_add_u32 s{S_T0}, s{S_T0}, {GT}")
    for k in range(5): a(f"buffer_load_dwordx4 v[{8+4*k}:{11+4*k}], v4, s[8:11], s{S_T1} offen offset:{16*k}")
    a("v_mov_b32 v28, 0\nv_mov_b32 v29, 0")
    for k in range(20):
        if k % 4 == 0: a(f"s_waitcnt vmcnt({4 - k//4})")
        a(f"v_lshlrev_b32 v30, 16, v{8+k}\nv_and_b32 v31, 0xffff0000, v{8+k}\nv_pk_mul_f32 v[30:31], v[30:31], v[{32+2*k}:{33+2*k}]")
        a(f"v_cvt_pk_bf16_f32 v72, v30, v31\nv_lshlrev_b32 v30, 16, v72\nv_and_b32 v31, 0xffff0000, v72\nv_pk_add_f32 v[28:29], v[28:29], v[30:31]")
    a("v_add_f32 v28, v28, v29")
    for sh in (8, 4, 2, 1): a(f"v_add_f32_dpp v28, v28, v28 row_ror:{sh} row_mask:0xf bank_mask:0xf")
    a(f"v_cvt_pk_bf16_f32 v28, v28, v28\nv_lshlrev_b32 v28, 16, v28\nv_mul_f32 v28, {f32bits(-math.log2(math.e))}, v28\nv_exp_f32 v28, v28")
    a("v_add_f32 v28, 1.0, v28\nv_rcp_f32 v28, v28\nv_cvt_pk_bf16_f32 v28, v28, v28\nv_lshlrev_b32 v28, 16, v28")
    a("v_sub_f32 v29, 1.0, v28\nv_cvt_pk_bf16_f32 v29, v29, v29\nv_lshlrev_b32 v29, 16, v29")
    a(f"buffer_store_dwordx2 v[28:29], v5, s[4:7], s{S_T0} offen sc1")
    a(f"s_add_u32 s{S_T4}, s{S_T4}, 4\ns_cmp_lt_u32 s{S_T4}, 64\ns_cbranch_scc1 {L}")

def poll3(a, vaddr, vt, need_sreg, seen_sreg, nl=3):
    Lp = a.label("p3"); Lx = a.label("p3x")
    a(f"s_cmp_gt_u32 s{seen_sreg}, s{need_sreg}\ns_cbranch_scc1 {Lx}\ns_mov_b32 s{S_SPIN}, 0\n{Lp}:")
    a(f"buffer_load_dword v{vt}, v{vaddr}, s[4:7], 0 offen sc1")
    spin_fail(a, Lx)
    a(f"s_waitcnt vmcnt(0)\nv_readlane_b32 s{seen_sreg}, v{vt}, 0")
    for k in range(1, nl): a(f"v_readlane_b32 s{S_T0}, v{vt}, {k}\ns_min_u32 s{seen_sreg}, s{seen_sreg}, s{S_T0}")
    a(f"s_cmp_gt_u32 s{seen_sreg}, s{need_sreg}\ns_cbranch_scc1 {Lx}\ns_sleep {CFG.get('psl', 4)}\ns_branch {Lp}\n{Lx}:")

def role_T4(a, cfg):
    Q0, K0, V0, KM0, VM0 = 0, 48, 96, 144, 168
    O0 = 16; S0 = 112; P0 = 132; G0 = 148; T = 152; LA = 2; A16 = 3; KML = 4; FT = 5; FC = 6; GA = 7; FO = 8
    s_n, s_x8, s_seg, s_h, s_base, s_g, s_nseg, s_nh, s_nbase, s_has, s_seenT, s_seenC = 54, 55, 56, 57, 58, 59, 60, 61, 62, 63, 64, 65
    MK = 66
    a(f"s_mul_i32 s{S_T0}, s{S_T3}, 21846\ns_lshr_b32 s{S_T0}, s{S_T0}, 16\ns_lshl_b32 s{s_x8}, s{S_T0}, 3\ns_mul_i32 s{S_T0}, s{S_T0}, 3\ns_sub_u32 s{S_T0}, s{S_T3}, s{S_T0}")
    a(f"s_lshl_b32 s{S_T0}, s{S_T0}, 2\ns_add_u32 s{s_n}, s{S_T0}, s{S_WAVE}")
    a(f"v_lshrrev_b32 v{T}, 4, v{V_LANE}\nv_and_b32 v{T+1}, 15, v{V_LANE}\nv_lshlrev_b32 v{T+2}, 9, v{T}\nv_lshl_add_u32 v{LA}, v{T+1}, 4, v{T+2}\nv_lshlrev_b32 v{A16}, 4, v{V_LANE}")
    a(f"v_bfe_u32 v{T+2}, v{V_LANE}, 2, 2\nv_and_b32 v{T+3}, 1, v{V_LANE}\nv_lshl_add_u32 v{T+2}, v{T+2}, 1, v{T+3}\nv_lshlrev_b32 v{T+3}, 7, v{T}\nv_lshl_add_u32 v{KML}, v{T+2}, 4, v{T+3}")
    a(f"v_lshlrev_b32 v{GA}, 3, v{T+1}")
    for r in range(4): a(f"v_lshl_add_u32 v{T+2}, v{T}, 2, {r}\nv_cmp_gt_u32 s[{MK+2*r}:{MK+2*r+1}], v{T+2}, v{T+1}")
    a(f"v_mov_b32 v{FO}, {OOB}\nv_cmp_lg_u32 vcc, 0, v{V_LANE}\nv_cndmask_b32 v{FO}, 0, v{FO}, vcc".replace("v_cmp_lg_u32", "v_cmp_ne_u32"))
    for r in (P0+2, P0+3, P0+9, P0+10, P0+13, P0+14): a(f"v_mov_b32 v{r}, 0")
    def decode(n, seg, h, base):
        a(f"s_lshr_b32 s{seg}, s{n}, 3\ns_and_b32 s{h}, s{n}, 7\ns_add_u32 s{h}, s{h}, s{s_x8}\ns_lshl_b32 s{base}, s{seg}, 5\ns_add_u32 s{base}, s{base}, s{h}\ns_mul_i32 s{base}, s{base}, 12288")
    def flagaddr(v, h, fbase):
        a(f"s_mul_i32 s{S_T0}, s{h}, 384\ns_add_u32 s{S_T0}, s{S_T0}, {fbase}\nv_min_u32 v{v}, 2, v{V_LANE}\nv_lshl_add_u32 v{v}, v{v}, 7, s{S_T0}")
    def loadKQ(reg0, gbase, base):
        for k in range(3): a(f"s_add_u32 s{74+k}, s{base}, {gbase + k*4096}")
        for tt in range(2):
            for u in range(6):
                r = reg0 + (tt*6 + u)*4
                a(f"buffer_load_dwordx4 a[{r}:{r+3}], v{LA}, s[4:7], s{74 + u//2} offen offset:{(u % 2)*2048 + tt*256} sc1")
    def loadV(base):
        for k in range(3): a(f"s_add_u32 s{74+k}, s{base}, {VX + k*4096}")
        for T_ in range(12): a(f"buffer_load_dwordx4 a[{V0+4*T_}:{V0+4*T_+3}], v{A16}, s[4:7], s{74 + T_//4} offen offset:{(T_ % 4)*1024} sc1")
    poll_dbg_ge(a, DBG_INIT, 160, T)
    poll_dbg_ge(a, DBG_GATE, 8, T)
    decode(s_n, s_seg, s_h, s_base)
    flagaddr(FT, s_h, F_T1)
    a(f"s_mov_b32 s{s_seenT}, 0")
    poll3(a, FT, T, s_seg, s_seenT)
    loadKQ(K0, KX, s_base); loadKQ(Q0, QX, s_base); loadV(s_base)
    Lt = a.label("t4"); Lend = a.label("t4e")
    mf = lambda d, A, B, C: f"v_mfma_f32_16x16x32_bf16 v[{d}:{d+3}], {A}, {B}, {C}"
    ar = lambda r: f"a[{r}:{r+3}]"
    a(f"{Lt}:")
    a("s_waitcnt vmcnt(12)")
    for u in range(6):
        for d, kt, qt in ((S0, 0, 0), (S0+4, 0, 1), (S0+8, 1, 1)):
            a(mf(d, ar(K0 + (kt*6 + u)*4), ar(Q0 + (qt*6 + u)*4), "0" if u == 0 else f"v[{d}:{d+3}]"))
    Lnn = a.label("t4n")
    a(f"s_add_u32 s{s_n}, s{s_n}, 12\ns_cmp_lt_u32 s{s_n}, 512\ns_cselect_b32 s{s_has}, 1, 0\ns_cbranch_scc0 {Lnn}")
    decode(s_n, s_nseg, s_nh, s_nbase)
    flagaddr(FT, s_nh, F_T1)
    a(f"s_mov_b32 s{s_seenT}, 0")
    poll3(a, FT, T, s_nseg, s_seenT)
    loadKQ(K0, KX, s_nbase)
    a(f"{Lnn}:")
    flagaddr(FC, s_h, F_CH)
    a(f"s_mov_b32 s{s_seenC}, 0")
    poll3(a, FC, T, s_seg, s_seenC)
    a(f"s_lshr_b32 s{S_T0}, s{s_base}, 2\ns_add_u32 s{S_T1}, s{S_T0}, {KM}\ns_add_u32 s{S_T2}, s{S_T0}, {VM}\ns_lshl_b32 s{s_g}, s{s_seg}, 8\ns_add_u32 s{s_g}, s{s_g}, {GT}")
    for u in range(6): a(f"buffer_load_dwordx4 a[{KM0+4*u}:{KM0+4*u+3}], v{KML}, s[4:7], s{S_T1} offen offset:{u*512} sc1")
    for j in range(3): a(f"buffer_load_dwordx4 a[{VM0+4*j}:{VM0+4*j+3}], v{A16}, s[4:7], s{S_T2} offen offset:{j*1024} sc1")
    for qt in range(2): a(f"buffer_load_dword v{G0+qt}, v{GA}, s[4:7], s{s_g} offen offset:{qt*128} sc1")
    a(f"v_mov_b32 v{T}, 0xff800000")
    for r in range(4):
        a(f"v_cndmask_b32 v{S0+r}, v{S0+r}, v{T}, s[{MK+2*r}:{MK+2*r+1}]\nv_cndmask_b32 v{S0+8+r}, v{S0+8+r}, v{T}, s[{MK+2*r}:{MK+2*r+1}]")
    for u in range(6):
        a(f"s_waitcnt vmcnt({10-u})")
        for qt in range(2):
            d = S0 + 12 + 4*qt
            a(mf(d, ar(KM0 + 4*u), ar(Q0 + (qt*6 + u)*4), "0" if u == 0 else f"v[{d}:{d+3}]"))
    a("s_waitcnt vmcnt(0)")
    Lq = a.label("t4q")
    a(f"s_cmp_eq_u32 s{s_has}, 0\ns_cbranch_scc1 {Lq}")
    loadKQ(Q0, QX, s_nbase)
    a(f"{Lq}:")
    def xred(op, x, y):
        a(f"v_mov_b32 v{y}, v{x}\nv_permlane32_swap_b32 v{x}, v{y}\n{op} v{x}, v{x}, v{y}\nv_mov_b32 v{y}, v{x}\nv_permlane16_swap_b32 v{x}, v{y}\n{op} v{x}, v{x}, v{y}")
    vals = ([S0, S0+1, S0+2, S0+3, S0+12, S0+13], [S0+4, S0+5, S0+6, S0+7, S0+8, S0+9, S0+10, S0+11, S0+16, S0+17])
    for qt in range(2):
        v = vals[qt]; m = T + 2*qt
        a(f"v_max3_f32 v{m}, v{v[0]}, v{v[1]}, v{v[2]}")
        for k in range(3, len(v) - 1, 2): a(f"v_max3_f32 v{m}, v{m}, v{v[k]}, v{v[k+1]}")
        a(f"v_max_f32 v{m}, v{m}, v{v[-1]}")
        xred("v_max_f32", m, T + 4)
        for k in range(0, len(v), 2): a(f"v_pk_add_f32 v[{v[k]}:{v[k]+1}], v[{v[k]}:{v[k]+1}], v[{m}:{m+1}] op_sel_hi:[1,0] neg_lo:[0,1] neg_hi:[0,1]")
        for r in v: a(f"v_exp_f32 v{r}, v{r}")
        pb = P0 + 4*qt
        for k in range(0, len(v) - 2, 2): a(f"v_cvt_pk_bf16_f32 v{pb + k//2}, v{v[k]}, v{v[k+1]}")
        a(f"v_cvt_pk_bf16_f32 v{P0+8+4*qt}, v{v[-2]}, v{v[-1]}\nv_cvt_pk_bf16_f32 v{P0+11+4*qt}, v{v[-2]}, v{v[-1]}")
        for k in range(2, len(v), 2): a(f"v_pk_add_f32 v[{v[0]}:{v[0]+1}], v[{v[0]}:{v[0]+1}], v[{v[k]}:{v[k]+1}]")
        a(f"v_add_f32 v{m}, v{v[0]}, v{v[0]+1}")
        xred("v_add_f32", m, T + 4)
        a(f"v_rcp_f32 v{m}, v{m}\nv_mul_f32 v{m}, v{m}, v{G0+qt}")
    def pv(T_):
        r = []
        for qt in range(2):
            d = O0 + (T_*2 + qt)*4
            r.append(mf(d, ar(V0 + 4*T_), f"v[{P0+4*qt}:{P0+4*qt+3}]", "0"))
        for qt in range(2):
            d = O0 + (T_*2 + qt)*4; vm = VM0 + (T_//4)*4 + 2*((T_ % 4) >> 1); pm = P0 + 8 + 4*qt + 2*(T_ & 1)
            r.append(f"v_mfma_f32_16x16x16_bf16 v[{d}:{d+3}], a[{vm}:{vm+1}], v[{pm}:{pm+1}], v[{d}:{d+3}]")
        return r
    def oepi(P):
        r = []
        for qt in range(2):
            e = T + 8 + 4*((2*P + qt) % 4); m = T + 2*qt
            for h2 in range(2):
                d = O0 + ((2*P + h2)*2 + qt)*4
                for i in range(2): r.append(f"v_pk_mul_f32 v[{d+2*i}:{d+2*i+1}], v[{d+2*i}:{d+2*i+1}], v[{m}:{m+1}] op_sel_hi:[1,0]")
                r += cvt4(e + 2*h2, d)
            r.append(f"buffer_store_dwordx4 v[{e}:{e+3}], v{LA}, s[4:7], s{77 + P//2} offen offset:{(P % 2)*2048 + qt*256} sc1")
        return r
    for k in range(3): a(f"s_add_u32 s{77+k}, s{s_base}, {OX + k*4096}")
    for P in range(7):
        mm = (pv(2*P) + pv(2*P + 1)) if P < 6 else []
        ee = oepi(P - 1) if P >= 1 else []
        if not mm:
            for x in ee: a(x)
            continue
        for i, x in enumerate(mm):
            a(x)
            if i >= 2:
                for y in ee[(i-2)*len(ee)//6:(i-1)*len(ee)//6]: a(y)
    Lf = a.label("t4f"); Lf2 = a.label("t4f2")
    a(f"s_cmp_eq_u32 s{s_has}, 0\ns_cbranch_scc1 {Lf}")
    loadV(s_nbase)
    a(f"s_waitcnt vmcnt(12)\ns_branch {Lf2}\n{Lf}:\ns_waitcnt vmcnt(0)\n{Lf2}:")
    a(f"s_lshl_b32 s{S_T0}, s{s_seg}, 5\ns_add_u32 s{S_T0}, s{S_T0}, s{s_h}\ns_lshl_b32 s{S_T0}, s{S_T0}, 2\ns_add_u32 s{S_T0}, s{S_T0}, {F_O}\nv_mov_b32 v{T+4}, 1")
    a(f"buffer_store_dword v{T+4}, v{FO}, s[4:7], s{S_T0} offen sc1")
    a(f"s_cmp_eq_u32 s{s_has}, 0\ns_cbranch_scc1 {Lend}")
    a(f"s_mov_b32 s{s_seg}, s{s_nseg}\ns_mov_b32 s{s_h}, s{s_nh}\ns_mov_b32 s{s_base}, s{s_nbase}\ns_branch {Lt}")
    a(f"{Lend}:")
    stamp(a, 3)

def role_T5(a, cfg):
    E_ = Eng; t = E_.V_T
    s_kq, s_nn, s_fo = 76, 77, 78
    a(f"s_mov_b32 s{s_kq}, s{S_T3}\ns_mov_b32 s{s_nn}, s{S_T4}")
    srd(a, 8, P_WO, D*H*E*2)
    poll_dbg_ge(a, DBG_WLD, 96, t)
    lane_rows(a, E_.V_EA, 4, 1280)
    a(f"s_mul_i32 s{E_.S_WA}, s{s_kq}, {1536*1280}\ns_mul_i32 s{S_T0}, s{S_WAVE}, {4*1280}\ns_add_u32 s{E_.S_WA}, s{E_.S_WA}, s{S_T0}\ns_lshl_b32 s{S_T0}, s{s_nn}, 8\ns_add_u32 s{E_.S_WA}, s{E_.S_WA}, s{S_T0}")
    a(f"s_lshl_b32 s{S_T0}, s{S_WAVE}, 6")
    tr_addr(a, E_.V_EA+1, 8, 4, S_T0)
    def reads(u, base):
        return [f"ds_read_b64_tr_b16 {wreg2(u*2 + tau, m)}, v{E_.V_EA+1} offset:{base + tau*8 + m*1024}" for tau in range(2) for m in range(2)]
    stage_weights(a, 48, [(8, E_.V_EA, E_.S_WA, lambda u, k: ((u//6)*192 + 32*(u % 6) + 16*k)*1280, 2, 0)], reads, 8, lds0=0)
    stamp(a, 1)
    stream_linear(a, 12)
    a(f"s_mul_i32 s{E_.S_SOFF}, s{s_kq}, {8*12288}\ns_add_u32 s{E_.S_SOFF}, s{E_.S_SOFF}, {OX}\ns_mov_b32 s{E_.S_NSEG}, {2*NSEG}")
    a(f"s_lshl_b32 s{S_T0}, s{s_nn}, 2\ns_add_u32 s{S_T0}, s{S_T0}, s{s_kq}\ns_lshl_b32 s{E_.S_ENX}, s{S_T0}, 14\ns_add_u32 s{E_.S_ENX}, s{E_.S_ENX}, {PART}\ns_mov_b32 s{E_.S_EST}, {5*4*16384}")
    a(f"s_lshl_b32 s{S_T0}, s{S_T0}, 7\ns_add_u32 s{S_T0}, s{S_T0}, {F_T5}")
    flag_addr(a, E_.V_FL, S_T0)
    a(f"s_lshl_b32 s{S_T0}, s{S_WAVE}, 12\nv_lshlrev_b32 v{E_.V_EA}, 4, v{V_LANE}\nv_add_u32 v{E_.V_EA}, s{S_T0}, v{E_.V_EA}")
    a(f"s_lshl_b32 s{s_fo}, s{s_kq}, 5\ns_add_u32 s{s_fo}, s{s_fo}, {F_O}\nv_mov_b32 v{E_.V_EA+2}, 0")
    poll_dbg_ge(a, DBG_INIT, 160, t)
    def pre_dma(a, kp):
        Lp = a.label("t5p"); Lx = a.label("t5x")
        a(f"s_add_u32 s{S_T2}, s{E_.S_SEG}, 2\ns_cmp_ge_u32 s{S_T2}, {2*NSEG}\ns_cbranch_scc1 {Lx}")
        a(f"s_lshr_b32 s{S_T2}, s{S_T2}, 1\ns_lshl_b32 s{S_T2}, s{S_T2}, 7\ns_add_u32 s{S_T2}, s{S_T2}, s{s_fo}\ns_mov_b32 s{S_SPIN}, 0\n{Lp}:")
        a(f"buffer_load_dwordx4 v[2:5], v{E_.V_EA+2}, s[4:7], s{S_T2} offen offset:{16*kp} sc1")
        spin_fail(a, Lx)
        a(f"s_waitcnt vmcnt(0)\nv_and_b32 v2, v2, v3\nv_bitop3_b32 v2, v2, v4, v5 bitop3:0x80\nv_readfirstlane_b32 s{S_T0}, v2\ns_cmp_eq_u32 s{S_T0}, 1\ns_cbranch_scc1 {Lx}\ns_sleep {CFG.get('psl', 4)}\ns_branch {Lp}\n{Lx}:")
    def epi(acc):
        return [f"buffer_store_dwordx4 v[{acc+4*i}:{acc+4*i+3}], v{E_.V_EA}, s[4:7], s{E_.S_EOFF} offen offset:{1024*i} sc1" for i in range(4)]
    engine(a, "t5", 24, 2, "AA", 2, 4, lambda kp: 49152 if kp == 0 else 32*12288 - 49152, 'lin', epi, 4, xflags="sc1", pre_dma=pre_dma, flag=E_.V_FL)
    stamp(a, 3)

def role_C2(a, cfg):
    L4 = a.label("c4"); Lnp = a.label("npb"); Lng = a.label("ng")
    a(f"s_sub_u32 s79, s{S_ROLE}, 128\ns_lshr_b32 s{S_T3}, s79, 3\ns_and_b32 s{S_T4}, s79, 7\ns_cmp_ge_u32 s{S_T4}, 5\ns_cbranch_scc1 {L4}")
    dbg_add(a, DBG_INIT)
    role_T5(a, cfg)
    a(f"s_branch L_exit\n{L4}:")
    a(f"s_mul_i32 s{S_T3}, s{S_T3}, 3\ns_add_u32 s79, s{S_T3}, s{S_T4}\ns_sub_u32 s79, s79, 5")
    dbg_add(a, DBG_INIT)
    a(f"s_cmp_ge_u32 s79, 8\ns_cbranch_scc1 {Lng}\ns_mov_b32 s{S_T3}, s79")
    gate(a)
    dbg_add(a, DBG_GATE)
    a(f"{Lng}:")
    a(f"s_mov_b32 s{S_T3}, s79")
    role_T4(a, cfg)
```

```python
S=2048; D=640; H=32; E=192; M=8; SEG=32; NSEG=64
MB = 1 << 20
F_T1   = 0x0000
F_E2   = 0x4000
F_CH   = 0x8000
F_T5   = 0xC000
F_PAR  = 0x20000
F_O    = 0x10000
CTRL_BYTES = 0x12000
ABUF   = 1*MB
ABUF_BYTES = 96*2048
R_MEM  = 2*MB
R_B0   = 4*MB
R_B1   = 6*MB
KX = 16*MB; VX = 48*MB; QX = 80*MB; OX = 112*MB
KM = 144*MB; VM = 152*MB
QB = 160*MB; KB = 164*MB; VB = 168*MB; OB = 172*MB
GT = 176*MB
YB = 180*MB
PART = 192*MB
WS_BYTES = 256*MB
DBG_INIT = 8; DBG_T2 = 40; DBG_T3 = 9; DBG_ERR = 41; DBG_GATE = 42; DBG_Q = 11
def dbg_xcd(x): return (x & 1)*32 + (x >> 1)
KNAME = "gated_mix__memory_aug_recurrent_mem_tr__mha_block__prompt_kernel"
```

```python
from gen_b import *
def build(cfg):
    CFG.clear(); CFG.update(cfg)
    a = Asm()
    prologue(a, cfg)
    a("L_g1:")
    role_T1(a, cfg)
    a("s_branch L_t3")
    a("L_gb:")
    role_B(a, cfg)
    a("L_t3:")
    role_T3(a, cfg)
    stamp(a, 4)
    a(f"s_cmp_ge_u32 s{S_ROLE}, 80\ns_cbranch_scc1 L_exit\ns_mov_b32 s{S_T3}, s{S_ROLE}")
    role_T3b(a, cfg)
    a("s_branch L_exit")
    a("L_gc:")
    role_C2(a, cfg)
    a("s_branch L_exit")
    a("L_chain:")
    role_chain(a, cfg)
    a("L_exit:\ns_endpgm")
    body = a.finish(cfg.get("verbose", False))
    hdr = open("gated_mix__memory_aug_recurrent_mem_tr__mha_block__prompt.s.ref").read().split("\n")
    top = [l for l in hdr if l.startswith(";") and "@launch" not in l and "Override" not in l and "grid=ceil" not in l]
    txt = "\n".join(top) + "\n; @launch grid=(256,1,1) block=(256,1,1) lds=163840\n"
    txt += f'.amdgcn_target "amdgcn-amd-amdhsa--gfx950"\n.text\n.globl {KNAME}\n.p2align 8\n.type {KNAME},@function\n{KNAME}:\n'
    txt += body
    txt += f'''.section .rodata,"a"
.p2align 6
.amdhsa_kernel {KNAME}
  .amdhsa_next_free_vgpr 512
  .amdhsa_next_free_sgpr 102
  .amdhsa_accum_offset 256
  .amdhsa_group_segment_fixed_size 0
  .amdhsa_kernarg_size 112
  .amdhsa_user_sgpr_count 2
  .amdhsa_user_sgpr_kernarg_segment_ptr 1
  .amdhsa_system_sgpr_workgroup_id_x 1
.end_amdhsa_kernel
'''
    return txt
if __name__ == "__main__":
    out = sys.argv[1] if len(sys.argv) > 1 else "k.s"
    open(out, "w").write(build(dict({"verbose": "-v" in sys.argv, "prof": "-p" in sys.argv}, **{k: eval(v) for k, v in (x.split("=", 1) for x in sys.argv[2:] if "=" in x)})))
```

```python
from gen_misc import *

def role_T2(a, cfg):
    E_ = Eng; t = E_.V_T
    s_cg, s_tp = 76, 77
    a(f"s_mul_i32 s{s_tp}, s{S_T3}, 6554\ns_lshr_b32 s{s_tp}, s{s_tp}, 16\ns_mul_i32 s{S_T0}, s{s_tp}, 10\ns_sub_u32 s{s_cg}, s{S_T3}, s{S_T0}")
    srd(a, 8, P_WQKV, D*3*D*2); srd(a, 72, P_X, S*D*2)
    cb = 20**-0.5 * math.log2(math.e)
    a(f"s_cmp_lt_u32 s{s_cg}, 5\ns_mov_b32 s{S_T0}, {f32bits(cb)}\ns_cselect_b32 s{E_.S_SC}, s{S_T0}, 1.0\ns_mov_b32 s{E_.S_SC+1}, s{E_.S_SC}")
    a(f"s_mov_b32 s{S_T0}, {KB}\ns_cselect_b32 s78, {QB}, s{S_T0}\ns_cselect_b32 s79, 0, 160")
    lane_rows(a, E_.V_EP, 4, 3840); lane_rows(a, E_.V_EP+3, 3, 3840)
    a(f"s_mul_i32 s{S_T0}, s{S_WAVE}, {8*3840}\ns_lshl_b32 s{E_.S_WA}, s{s_cg}, 8\ns_add_u32 s{E_.S_WA}, s{E_.S_WA}, s{S_T0}")
    a(f"s_lshl_b32 s{E_.S_WB}, s{s_cg}, 7\ns_add_u32 s{E_.S_WB}, s{E_.S_WB}, s{S_T0}\ns_add_u32 s{E_.S_WB}, s{E_.S_WB}, 2560")
    a(f"s_lshl_b32 s{S_T0}, s{S_WAVE}, 6\ns_add_u32 s{S_T0}, s{S_T0}, 81920")
    tr_addr(a, E_.V_EP+1, 8, 3, S_T0)
    a(f"s_lshl_b32 s{S_T0}, s{S_WAVE}, 5\ns_add_u32 s{S_T0}, s{S_T0}, {81920 + 8192}")
    tr_addr(a, E_.V_EP+2, 7, 3, S_T0)
    a(f"v_and_b32 v{t+4}, 15, v{V_LANE}\nv_lshrrev_b32 v{t+5}, 4, v{V_LANE}")
    for tau in range(2):
        a(f"s_lshl_b32 s{S_T0}, s{s_cg}, 5\ns_lshl_b32 s{S_T1}, s{S_WAVE}, 3\ns_add_u32 s{S_T0}, s{S_T0}, s{S_T1}\ns_add_u32 s{S_T0}, s{S_T0}, {4*tau}\ns_sub_u32 s{S_T0}, s{S_T0}, s79")
        a(f"v_add_u32 v{t}, s{S_T0}, v{t+5}\nv_mul_u32_u24 v{t+1}, 13108, v{t}\nv_lshrrev_b32 v{t+1}, 16, v{t+1}\nv_mul_u32_u24 v{t+2}, 5, v{t+1}\nv_sub_u32 v{t}, v{t}, v{t+2}")
        a(f"v_mul_u32_u24 v{t+1}, 81920, v{t+1}\nv_lshrrev_b32 v{t+2}, 1, v{t}\nv_lshl_add_u32 v{t+1}, v{t+2}, 9, v{t+1}\nv_and_b32 v{t+2}, 1, v{t}\nv_lshl_add_u32 v{t+1}, v{t+2}, 3, v{t+1}\nv_add_u32 v{t+1}, s78, v{t+1}")
        a(f"v_cmp_eq_u32 vcc, 4, v{t}\nv_mov_b32 v{t+2}, 4\nv_cndmask_b32 v{t+2}, v{t+2}, 3, vcc".replace("v_cndmask_b32 v{t+2}, v{t+2}, 3, vcc", ""))
        a(f"v_mov_b32 v{t+3}, 3\nv_cndmask_b32 v{t+2}, v{t+2}, v{t+3}, vcc")
        a(f"v_lshrrev_b32 v{t}, 3, v{t+4}\nv_lshlrev_b32 v{t}, 4, v{t}\nv_and_or_b32 v{t}, v{t+4}, 7, v{t}")
        a(f"v_lshlrev_b32 v{t+3}, v{t+2}, v{t}\nv_add_u32 v{E_.V_EA+2*tau}, v{t+1}, v{t+3}\nv_add_u32 v{t}, 8, v{t}\nv_lshlrev_b32 v{t+3}, v{t+2}, v{t}\nv_add_u32 v{E_.V_EA+2*tau+1}, v{t+1}, v{t+3}")
    a(f"s_lshl_b32 s{S_T0}, s{s_cg}, 6\ns_lshl_b32 s{S_T1}, s{S_WAVE}, 4\ns_add_u32 s{S_T0}, s{S_T0}, s{S_T1}\nv_add_u32 v{t}, s{S_T0}, v{t+4}")
    a(f"v_mul_u32_u24 v{t+1}, 3277, v{t}\nv_lshrrev_b32 v{t+1}, 16, v{t+1}\nv_mul_u32_u24 v{t+2}, 20, v{t+1}\nv_sub_u32 v{t}, v{t}, v{t+2}")
    a(f"v_mul_u32_u24 v{t+1}, 81920, v{t+1}\nv_lshl_add_u32 v{t}, v{t}, 4, v{t+1}\nv_mul_u32_u24 v{t+1}, 320, v{t+5}\nv_add_u32 v{t}, v{t}, v{t+1}\nv_add_u32 v{E_.V_EA+4}, {VB}, v{t}")
    a(f"s_mul_i32 s{S_T0}, s{s_tp}, 22\ns_mul_i32 s{E_.S_SOFF}, s{S_T0}, 40960\ns_mul_i32 s{E_.S_ENX}, s{S_T0}, 1280\ns_mov_b32 s{E_.S_EST}, 1280")
    a(f"s_cmp_eq_u32 s{s_tp}, 2\ns_cselect_b32 s{E_.S_NSEG}, 20, 22")
    stream_rowmajor(a, perm=True)
    def reads(u, base):
        r = []; o = base - 81920
        for tau in range(2):
            for m in range(2): r.append(f"ds_read_b64_tr_b16 {wreg2(u*3 + tau, m)}, v{E_.V_EP+1} offset:{o + tau*32 + m*1024}")
        for m in range(2): r.append(f"ds_read_b64_tr_b16 {wreg2(u*3 + 2, m)}, v{E_.V_EP+2} offset:{o + m*512}")
        return r
    def staging(prime):
        stage_weights(a, 20, [(8, E_.V_EP, E_.S_WA, lambda u, k: (32*u + 4*k)*3840, 2, 0), (8, E_.V_EP+3, E_.S_WB, lambda u, k: 32*u*3840, 1, 8192)],
                      reads, 5, lds0=81920, early=prime)
        stamp(a, 1)
    def epi(acc):
        r = []; P = E_.V_EP
        for tau in range(2):
            for tt in range(2):
                d = acc + 4*(2*tau + tt); e = P + 2*(2*tau + tt)
                for i in range(4): r.append(f"v_mul_f32 v{d+i}, s{E_.S_SC}, v{d+i}")
                r += cvt4(e, d)
                r.append(f"buffer_store_dwordx2 v[{e}:{e+1}], v{E_.V_EA+2*tau+tt}, s[4:7], s{E_.S_EOFF} offen sc1")
        r += cvt4(P + 8, acc + 16) + cvt4(P + 10, acc + 20)
        r.append(f"buffer_store_dwordx4 v[{P+8}:{P+11}], v{E_.V_EA+4}, s[4:7], s{E_.S_EOFF} offen sc1")
        return r
    engine(a, "t2", 20, 3, "AAB", 1, 72, lambda p: 40960, 'perm', epi, 5, staging=staging)
    stamp(a, 2)

def role_T3(a, cfg):
    QA, QBr, MF, G1 = (8, 16), (12, 20), (24, 25), (26, 27)
    OA = (32, 48); SS = (64, 80); EE = (96, 176); PP = (112, 120); F0 = 128; T = 160
    A16, VK, VV, VK0, VV0, VST, QAD, OAD = 2, 3, 4, 5, 6, 7, 28, 29
    KA = lambda b: F0 + 16*b; KBr = lambda b: F0 + 16*b + 4; VA = lambda b: F0 + 16*b + 8
    s_task, s_h, s_tok, s_src, s_chd, s_rs, s_ldw, s_it, s_goff = 54, 55, 56, 57, 58, 59, 60, 61, 62
    ONES = 81920; BOX = 92160
    t = T
    poll_dbg_ge(a, DBG_T2, 32, t); poll_dbg_ge(a, DBG_GATE, 8, t)
    a("s_barrier")
    a(f"v_lshlrev_b32 v{A16}, 4, v{V_LANE}\nv_lshlrev_b32 v{t}, 4, v0\nv_add_u32 v{t}, {ONES}, v{t}")
    for r in range(4): a(f"v_mov_b32 v{t+4+r}, 0x3f803f80")
    for k in range(3): a(f"ds_write_b128 v{t}, v[{t+4}:{t+7}] offset:{k*4096}")
    a(f"v_and_b32 v{t}, 31, v{V_LANE}\nv_lshrrev_b32 v{t+1}, 5, v{V_LANE}")
    a(f"v_lshlrev_b32 v{QAD}, 3, v{t}\nv_mov_b32 v{VK0}, v{A16}\ns_mov_b32 s67, 0x07060302\ns_mov_b32 s68, 0x40004000")
    a(f"v_mul_u32_u24 v{t+2}, 320, v{t+1}\nv_lshl_add_u32 v{t+2}, v{t}, 4, v{t+2}\nv_add_u32 v{t+2}, 10240, v{t+2}\nv_mov_b32 v{t+3}, {ONES}\nv_cmp_gt_u32 vcc, 20, v{t}\nv_cndmask_b32 v{VV0}, v{t+3}, v{t+2}, vcc")
    a(f"v_mov_b32 v{t+3}, 20480\nv_cndmask_b32 v{VST}, 0, v{t+3}, vcc")
    a(f"v_mul_u32_u24 v{OAD}, 1280, v{t}\nv_lshl_add_u32 v{OAD}, v{t+1}, 3, v{OAD}")
    a(f"s_mov_b32 s64, 0\ns_mov_b32 s65, -1")
    for b in range(2): a(f"v_mov_b32 v{KBr(b)+2}, 0x3f80\nv_mov_b32 v{KBr(b)+3}, 0")
    a(f"s_and_b32 s{S_T0}, s{S_WAVE}, 1\ns_mul_i32 s{S_T0}, s{S_T0}, 5120\ns_cmp_lt_u32 s{S_WAVE}, 2\ns_mov_b32 s{S_T1}, {VB}\ns_cselect_b32 s63, {KB}, s{S_T1}\ns_add_u32 s63, s63, s{S_T0}")
    a(f"s_mul_i32 s66, s{S_WAVE}, 5120")
    Ltask = a.label("t3task"); Lend = a.label("t3end")
    a(f"{Ltask}:")
    Lw = a.label("t3w")
    a(f"s_waitcnt lgkmcnt(0)\ns_barrier\ns_cmp_lg_u32 s{S_WAVE}, 0\ns_cbranch_scc1 {Lw}")
    a(f"v_mov_b32 v{t}, {DBG_Q*4}\nv_mov_b32 v{t+1}, 1\nv_mov_b32 v{t+3}, {BOX + 1024}\ns_mov_b64 exec, 1")
    a(f"global_atomic_add v{t+2}, v{t}, v{t+1}, s[{P_DBG}:{P_DBG+1}] sc0 sc1\ns_waitcnt vmcnt(0)\nds_write_b32 v{t+3}, v{t+2}\ns_mov_b64 exec, -1\ns_waitcnt lgkmcnt(0)")
    a(f"{Lw}:\ns_barrier\nv_mov_b32 v{t+3}, {BOX + 1024}\nds_read_b32 v{t+2}, v{t+3}\ns_waitcnt lgkmcnt(0)\nv_readfirstlane_b32 s{s_task}, v{t+2}")
    a(f"s_cmp_ge_u32 s{s_task}, 256\ns_cbranch_scc1 {Lend}")
    a(f"s_lshr_b32 s{s_h}, s{s_task}, 3\ns_and_b32 s{s_tok}, s{s_task}, 7\ns_lshl_b32 s{s_tok}, s{s_tok}, 3\ns_lshl_b32 s{S_T0}, s{S_WAVE}, 1\ns_add_u32 s{s_tok}, s{s_tok}, s{S_T0}")
    a(f"s_mul_i32 s{S_T0}, s{s_h}, 81920\ns_add_u32 s{s_src}, s63, s{S_T0}")
    a(f"s_mul_i32 s{S_T1}, s{s_tok}, 1280\ns_add_u32 s{S_T1}, s{S_T1}, s{S_T0}\ns_add_u32 s{S_T1}, s{S_T1}, {QB}")
    a(f"s_lshl_b32 s{s_goff}, s{s_tok}, 8\ns_add_u32 s{s_goff}, s{s_goff}, {GT + 4}")
    a(f"v_mov_b32 v{t}, {OOB}\nv_cndmask_b32 v{t}, v{QAD}, v{t}, s[64:65]")
    for q in range(2):
        a(f"buffer_load_dwordx4 v[{QA[q]}:{QA[q]+3}], v{A16}, s[4:7], s{S_T1} offen offset:{1280*q} sc1")
        a(f"buffer_load_dwordx2 v[{QBr[q]}:{QBr[q]+1}], v{t}, s[4:7], s{S_T1} offen offset:{1280*q+1024} sc1")
        a(f"buffer_load_dword v{G1[q]}, v{QAD}, s[4:7], s{s_goff} offen offset:{256*q} sc1")
        a(f"v_mov_b32 v{QBr[q]+2}, 0\nv_mov_b32 v{QBr[q]+3}, 0\nv_mov_b32 v{MF[q]}, 0")
        for r in range(16): a(f"v_mov_b32 v{OA[q]+r}, 0")
        for r in range(8): a(f"v_mov_b32 v{PP[q]+r}, 0")
    for r in range(8): a(f"v_mov_b32 v{VA(1)+r}, 0")
    def dma_chunk():
        r = []
        for k in range(5):
            r.append([f"s_add_u32 m0, s{s_ldw}, {k*1024}", f"s_add_u32 s{S_T1}, s{s_src}, {k*1024}", f"buffer_load_dwordx4 v{A16}, s[4:7], s{S_T1} offen sc1 lds"])
        r.append([f"s_add_u32 s{s_src}, s{s_src}, 10240", f"s_add_u32 s{s_chd}, s{s_chd}, 1", f"s_and_b32 s{S_T1}, s{s_chd}, 3", f"s_mul_i32 s{S_T1}, s{S_T1}, 20480", f"s_add_u32 s{s_ldw}, s66, s{S_T1}"])
        return r
    a(f"s_mov_b32 s{s_chd}, 0\ns_mov_b32 s{s_ldw}, s66\ns_mov_b32 s{s_rs}, 0\ns_mov_b32 s{s_it}, 0")
    for ch in range(2):
        for grp in dma_chunk():
            for x in grp: a(x)
    a(f"v_mov_b32 v{VK}, v{VK0}\nv_mov_b32 v{VV}, v{VV0}")
    a("s_waitcnt vmcnt(5)\ns_barrier")
    def readK(b, j):
        return [f"ds_read_b128 v[{KA(b)}:{KA(b)+3}], v{VK} offset:{j*1280}", f"ds_read_b64 v[{KBr(b)}:{KBr(b)+1}], v30 offset:{j*1280+1024}"]
    def readV(b, j): return [f"ds_read_b128 v[{VA(b)+4*m}:{VA(b)+4*m+3}], v{VV} offset:{j*1280 + m*640}" for m in range(2)]
    a(f"v_mov_b32 v30, v{QAD}")
    for x in readK(0, 0) + readV(0, 0): a(x)
    mm = lambda d, A, B, C: f"v_mfma_f32_32x32x16_bf16 v[{d}:{d+15}], v[{A}:{A+3}], v[{B}:{B+3}], {C}"
    def QK(q, b): return [mm(SS[q], KA(b), QA[q], "0"), mm(SS[q], KBr(b), QBr[q], f"v[{SS[q]}:{SS[q]+15}]")]
    def PV(q, b): return [mm(OA[q], VA(b) + 4*m, PP[q] + 4*m, f"v[{OA[q]}:{OA[q]+15}]") for m in range(2)]
    def adjust(q, first):
        S_ = SS[q]
        a(f"v_max3_f32 v{T}, v{S_}, v{S_+1}, v{S_+2}")
        for k in range(3, 15, 2): a(f"v_max3_f32 v{T}, v{T}, v{S_+k}, v{S_+k+1}")
        a(f"v_max_f32 v{T}, v{T}, v{S_+15}\nv_mov_b32 v{T+1}, v{T}\nv_permlane32_swap_b32 v{T}, v{T+1}\nv_max_f32 v{T}, v{T}, v{T+1}")
        a(f"v_add_f32 v{T}, 0x40c00000, v{T}\nv_add_f32 v{T}, v{T}, v{MF[q]}\nv_cvt_pk_bf16_f32 v{T}, v{T}, v{T}\nv_lshlrev_b32 v{T}, 16, v{T}")
        if not first: a(f"v_max_f32 v{T}, v{T}, v{MF[q]}")
        a(f"v_sub_f32 v{T+2}, v{T}, v{MF[q]}\nv_mov_b32 v{MF[q]}, v{T}")
        for k in range(8): a(f"v_pk_add_f32 v[{S_+2*k}:{S_+2*k+1}], v[{S_+2*k}:{S_+2*k+1}], v[{T+2}:{T+3}] op_sel_hi:[1,0] neg_lo:[0,1] neg_hi:[0,1]")
        if not first:
            a(f"v_exp_f32 v{T+2}, -v{T+2}")
            for k in range(8): a(f"v_pk_mul_f32 v[{OA[q]+2*k}:{OA[q]+2*k+1}], v[{OA[q]+2*k}:{OA[q]+2*k+1}], v[{T+2}:{T+3}] op_sel_hi:[1,0]")
        a(f"v_xor_b32 v{T}, 0x80000000, v{T}\nv_lshrrev_b32 v{T}, 16, v{T}\nv_cndmask_b32 v{QBr[q]+2}, v{T}, 0, s[64:65]")
    a("s_waitcnt vmcnt(5) lgkmcnt(0)")
    stamp(a, 7, T + 8)
    for q in range(2):
        for x in QK(q, 0): a(x)
    adjust(0, True); adjust(1, True)
    rare = []
    def pack(P_, E_, k): return f"v_perm_b32 v{P_+k}, v{E_+2*k+1}, v{E_+2*k}, s67"
    def prev_branch(q):
        Lr = a.label("t3r"); Lb = a.label("t3b")
        a(f"s_cbranch_vccnz {Lr}\n{Lb}:")
        rare.append((Lr, Lb, q))
    def unit(q, mf1, mf2, extra):
        S_ = SS[q]; P_ = PP[q]; E_ = EE[q]
        seq = []
        for k in range(8):
            seq.append(f"v_exp_f32 v{E_+2*k}, v{S_+2*k}"); seq.append(f"v_exp_f32 v{E_+2*k+1}, v{S_+2*k+1}")
            if k >= 1: seq.append(pack(P_, E_, k - 1))
            if k == 3: seq.append(f"v_or3_b32 v{T+4}, v{P_}, v{P_+1}, v{P_+2}")
            if k == 5: seq.append(f"v_or3_b32 v{T+4}, v{T+4}, v{P_+3}, v{P_+4}")
            if k == 7: seq.append(f"v_or3_b32 v{T+4}, v{T+4}, v{P_+5}, v{P_+6}")
        seq.append(pack(P_, E_, 7))
        seq.append(f"v_bitop3_b32 v{T+4}, v{T+4}, v{P_+7}, s68 bitop3:0xa8")
        seq.append(f"v_cmp_ne_u32 vcc, 0, v{T+4}")
        ins = {}
        for pos, x in extra + [(4, mf1[0]), (10, mf1[1]), (16, mf2[0]), (22, mf2[1])]: ins.setdefault(pos, []).append(x)
        for i, x in enumerate(seq):
            if i == 4: prev_branch(1 - q)
            for y in ins.get(i, []): a(y)
            a(x)
    Lch = a.label("t3ch")
    a(f"s_mov_b64 vcc, 0\n{Lch}:")
    for j in range(8):
        b = j & 1; nb = 1 - b
        if j == 7:
            a(f"s_add_u32 s{s_rs}, s{s_rs}, 1\ns_and_b32 s{s_rs}, s{s_rs}, 3\ns_mul_i32 s{S_T0}, s{s_rs}, 20480\nv_add_u32 v{VK}, s{S_T0}, v{VK0}\nv_add_u32 v30, s{S_T0}, v{QAD}\nv_mad_u32_u24 v{VV}, v{VST}, s{s_rs}, v{VV0}")
            a("s_waitcnt vmcnt(5)\ns_barrier")
        jn = (j + 1) % 8
        rk = readK(nb, jn); rv = readV(nb, jn)
        ex = [(1, rk[0]), (2, rk[1])]
        if j == 0:
            for gi, grp in enumerate(dma_chunk()):
                for xi, x in enumerate(grp): ex.append((5 + 3*gi + min(xi, 2), x))
        unit(0, QK(1, b), PV(1, nb), ex)
        unit(1, QK(0, nb), PV(0, b), [(1, rv[0]), (2, rv[1]), (4, "s_waitcnt lgkmcnt(2)")])
    a(f"s_add_u32 s{s_it}, s{s_it}, 1\ns_cmp_lt_u32 s{s_it}, 8\ns_cbranch_scc1 {Lch}")
    prev_branch(1)
    for x in PV(1, 1): a(x)
    stamp(a, 8, T + 8)
    a(f"s_mul_i32 s{S_T0}, s{s_tok}, {32*1280}\ns_mul_i32 s{S_T1}, s{s_h}, 40\ns_add_u32 s{S_T0}, s{S_T0}, s{S_T1}\ns_add_u32 s{S_T0}, s{S_T0}, {OB}\ns_add_u32 s{S_T1}, s{S_T0}, {32*1280}")
    a(f"v_mov_b32 v{T+6}, {OOB}\nv_cndmask_b32 v{T+6}, v{OAD}, v{T+6}, s[64:65]")
    for q in range(2):
        O_ = OA[q]
        a(f"v_mov_b32 v{T}, v{O_+8}\nv_mov_b32 v{T+2}, v{O_+8}\nv_permlane32_swap_b32 v{T}, v{T+2}\nv_rcp_f32 v{T+2}, v{T+2}\nv_mul_f32 v{T+2}, v{T+2}, v{G1[q]}")
        for i in range(3):
            for k in range(2): a(f"v_pk_mul_f32 v[{O_+4*i+2*k}:{O_+4*i+2*k+1}], v[{O_+4*i+2*k}:{O_+4*i+2*k+1}], v[{T+2}:{T+3}] op_sel_hi:[1,0]")
            e = EE[0] + 2*(3*q + i)
            for x in cvt4(e, O_ + 4*i): a(x)
            a(f"buffer_store_dwordx2 v[{e}:{e+1}], v{OAD if i < 2 else T+6}, s[4:7], s{S_T0 if q == 0 else S_T1} offen offset:{16*i} sc1")
    a("s_waitcnt vmcnt(0)")
    a(f"s_branch {Ltask}")
    for (Lr, Lb, q) in rare:
        a(f"{Lr}:")
        adjust(q, False)
        for k in range(16): a(f"v_exp_f32 v{EE[q]+k}, v{SS[q]+k}")
        for k in range(8): a(pack(PP[q], EE[q], k))
        a(f"s_branch {Lb}")
    a(f"{Lend}:")
    dbg_add(a, DBG_T3, t)

def role_T3b(a, cfg):
    E_ = Eng; t = E_.V_T
    s_nn, s_i, s_eseg, s_seen = 76, 77, 78, 79
    a(f"s_mul_i32 s{s_i}, s{S_T3}, 13108\ns_lshr_b32 s{s_i}, s{s_i}, 16\ns_mul_i32 s{S_T0}, s{s_i}, 5\ns_sub_u32 s{s_nn}, s{S_T3}, s{S_T0}")
    srd(a, 8, P_WOB, D*D*2); srd(a, 12, P_OUT, S*D*2)
    lane_rows(a, E_.V_EA, 4, 1280)
    a(f"s_mul_i32 s{S_T0}, s{S_WAVE}, {8*1280}\ns_lshl_b32 s{E_.S_WA}, s{s_nn}, 8\ns_add_u32 s{E_.S_WA}, s{E_.S_WA}, s{S_T0}")
    a(f"s_lshl_b32 s{S_T0}, s{S_WAVE}, 6")
    tr_addr(a, E_.V_EA+1, 8, 4, S_T0)
    def reads(u, base):
        return [f"ds_read_b64_tr_b16 {wreg2(u*2 + tau, m)}, v{E_.V_EA+1} offset:{base + tau*8 + m*1024}" for tau in range(2) for m in range(2)]
    a("s_barrier")
    stage_weights(a, 20, [(8, E_.V_EA, E_.S_WA, lambda u, k: (32*u + 4*k)*1280, 2, 0)], reads, cfg.get('wring', 4), lds0=0)
    stream_rowmajor(a)
    a(f"s_mul_i32 s{S_T0}, s{s_i}, 40960\ns_add_u32 s{E_.S_SOFF}, s{S_T0}, {OB}\ns_mov_b32 s{E_.S_ENX}, s{S_T0}\ns_mov_b32 s{E_.S_EST}, {8*40960}\ns_mov_b32 s{E_.S_NSEG}, 8")
    a(f"s_sub_u32 s{s_eseg}, s{s_i}, 8\ns_mov_b32 s{s_seen}, 0")
    a(f"s_lshl_b32 s{S_T0}, s{s_nn}, 8\ns_lshl_b32 s{S_T1}, s{S_WAVE}, 6\ns_add_u32 s{S_T0}, s{S_T0}, s{S_T1}")
    a(f"v_and_b32 v{t}, 15, v{V_LANE}\nv_mul_u32_u24 v{t}, 1280, v{t}\nv_lshrrev_b32 v{t+1}, 4, v{V_LANE}\nv_lshl_add_u32 v{t}, v{t+1}, 4, v{t}\nv_add_u32 v{E_.V_EA}, s{S_T0}, v{t}\nv_add_u32 v{E_.V_EA+1}, 20480, v{E_.V_EA}")
    a(f"s_lshl_b32 s{S_T0}, s{S_WAVE}, 12\nv_lshlrev_b32 v{t}, 4, v{V_LANE}\nv_add_u32 v{E_.V_EA+2}, s{S_T0}, v{t}")
    a(f"s_lshl_b32 s{S_T0}, s{s_nn}, 9\ns_add_u32 s{S_T0}, s{S_T0}, {F_T5}\nv_min_u32 v{t}, 3, v{V_LANE}\nv_lshl_add_u32 v{E_.V_EA+3}, v{t}, 7, s{S_T0}")
    poll_dbg_ge(a, DBG_T3, 96 + cfg.get('nb3', 32), t)
    stamp(a, 5)
    def epi_block(a, acc, final):
        Ls = a.label("t3bs"); P = E_.V_EP
        a(f"s_cmp_lt_i32 s{s_eseg}, 0\ns_cbranch_scc1 {Ls}")
        def gather(nsrc):
            for src in range(nsrc):
                for i in range(4): a(f"buffer_load_dwordx4 v[{P+16*src+4*i}:{P+16*src+4*i+3}], v{E_.V_EA+2}, s[4:7], s{S_T0} offen offset:{1024*i} sc1")
                if src < nsrc - 1: a(f"s_add_u32 s{S_T0}, s{S_T0}, 16384")
            for src in range(nsrc):
                a(f"s_waitcnt vmcnt({4*(nsrc - 1 - src)})")
                for k in range(8): a(f"v_pk_add_f32 v[{acc+2*k}:{acc+2*k+1}], v[{acc+2*k}:{acc+2*k+1}], v[{P+16*src+2*k}:{P+16*src+2*k+1}]")
        Lt = a.label("t3bt"); Lj = a.label("t3bj")
        if final: a(f"s_cmp_ge_u32 s{s_eseg}, {NMAIN}\ns_cbranch_scc1 {Lt}")
        poll3(a, E_.V_EA+3, t, s_eseg, s_seen, 4, slp=(2 if final else None))
        a(f"s_mul_i32 s{S_T0}, s{s_eseg}, 5\ns_add_u32 s{S_T0}, s{S_T0}, s{s_nn}\ns_lshl_b32 s{S_T0}, s{S_T0}, 16\ns_add_u32 s{S_T0}, s{S_T0}, {PART}")
        gather(4)
        if final:
            a(f"s_branch {Lj}\n{Lt}:")
            a(f"s_sub_u32 s{S_T0}, s{s_eseg}, {NMAIN}\ns_mul_i32 s{S_T0}, s{S_T0}, 5\ns_add_u32 s{S_T0}, s{S_T0}, s{s_nn}\ns_mul_i32 s{S_T0}, s{S_T0}, {9*16384}\ns_add_u32 s{S_T0}, s{S_T0}, {PART2 + 8*16384}")
            for i in range(4): a(f"buffer_store_dwordx4 v[{acc+4*i}:{acc+4*i+3}], v{E_.V_EA+2}, s[4:7], s{S_T0} offen offset:{1024*i} sc1")
            a(f"s_branch {Ls}\n{Lj}:")
        for tt in range(2):
            for tau in range(2):
                for x in cvt4(P + 4*tt + 2*tau, acc + 4*(2*tau + tt)): a(x)
            a(f"buffer_store_dwordx4 v[{P+4*tt}:{P+4*tt+3}], v{E_.V_EA+tt}, s[12:15], s{E_.S_EOFF} offen")
        a(f"{Ls}:\ns_add_u32 s{s_eseg}, s{s_eseg}, 8")
    engine(a, "t3b", 20, 2, "AA", 1, 4, lambda p: 8*40960, 'row', lambda acc: [], 0, xflags="sc1", epi_block=epi_block)
    stamp(a, 6)

def role_B(a, cfg):
    L = a.label("b2")
    dbg_add(a, DBG_INIT)
    poll_t1_started(a, Eng.V_T)
    a(f"s_sub_u32 s54, s{S_ROLE}, 96")
    for base, per in ((KM + NMAIN*32*3072, 6144), (VM + NMAIN*32*3072, 6144), (OX + NMAIN*32*12288, 24576), (PART2, 46080)):
        n4 = -(-per // 4096)
        a(f"s_mul_i32 s{S_T0}, s54, {per}\ns_add_u32 s{S_T0}, s{S_T0}, {base}")
        fill(a, S_T0, n4, -1)
    a(f"s_sub_u32 s{S_T3}, s{S_ROLE}, 96\ns_cmp_ge_u32 s{S_T3}, 30\ns_cbranch_scc1 {L}")
    role_T2(a, cfg)
    a(f"{L}:")
    dbg_add(a, DBG_T2, Eng.V_T)
```

```python
from gen_eng import *
DBG_WLD = 10
class Ch:
    A16 = 2; AST = 3; ALD = 4; BST = 5; BLD = 6; MST = 7
    MEMR = 8; DQ = 48; DK = 52; DV = 56; AO = 60; SEL = 76; PP = 80; KMA = 86; LQW = 87
    KXR = 88; VXR = 96; QOP = 108; SD = 116; OPR = 108; VMR = 120; LTR = 126; LOW = 127
    AL = 128; VL = 144; LOR = 164; IDX = 165; KDA = 166; FLA = 167; AML = 163; RL = 156; TFA = 162; TFV = 161; VST = 168; VLD = 169; LMW = 170; VMA = 171
    T = 172; WV = 176
    S_S = 54; S_TAG = 55; S_MEM = 56; S_MEMX = 57; S_BB = 58; S_B4 = 59; S_MODE = 60; S_OWN = 61
    S_SEEN = 62; S_PM = 63; S_HALF = 64; S_SC = 66
    S_ABASE = 68; S_A1 = 69; S_A2 = 70; S_KV = 72; S_KMO = 73; S_MSIG = 74; S_M4 = 75; S_T1F = 76; S_VH = 77
    S_C1 = 78; S_C2 = 79; S_C3 = 90; S_PV = 91; S_PK = 92; S_OKM = 93; S_OVM = 94; S_PV1 = 95; S_PV2 = 71; S_NXT = 80; S_H = 88; S_J = 89
LQ = 0; LK = 2048; LO = 4096; LMEM = 10240; LKX = 24576; LVX = 32768
AST_ = 4096

def wq(sg): return f"a[{8*sg}:{8*sg+7}]"
def wk(sg): return f"a[{80+8*sg}:{80+8*sg+7}]"
def wv(sg): return f"a[{160+8*sg}:{160+8*sg+7}]"
def wob(n): return ('a', 240 + 8*n) if n < 2 else ('v', Ch.WV + 8*(n - 2))
def wo(n):
    k, b = wob(n); return f"{k}[{b}:{b+7}]"

def spin_fail(a, target):
    a(f"s_add_u32 s{S_SPIN}, s{S_SPIN}, 1\ns_cmp_gt_u32 s{S_SPIN}, {SPIN_MAX}\ns_cbranch_scc1 {target}")
def sp(a, i):
    if not CFG.get("sprof"): return
    a(f"s_memtime s[96:97]\ns_waitcnt lgkmcnt(0)\ns_sub_u32 s98, s96, s99\ns_add_u32 s{16+i}, s{16+i}, s98\ns_mov_b32 s99, s96")
def fs(a, i):
    if CFG.get("fine"): a(f"s_memtime s[{16+2*i}:{17+2*i}]")
def cnt(a, i):
    if CFG.get("sprof"): a(f"s_add_u32 s{16+i}, s{16+i}, 1")
def backoff(a, n):
    if n: a(f"s_sleep {n}")

def chain_weights(a, cfg):
    C = Ch; R = S_ROLE; t = C.AL
    srd(a, 8, P_WQ, D*H*E*2); srd(a, 12, P_WK, D*H*E*2); srd(a, 80, P_WV, D*H*E*2); srd(a, 84, P_WO, D*H*E*2)
    a(f"s_mul_i32 s{C.S_H}, s{R}, 21846\ns_lshr_b32 s{C.S_H}, s{C.S_H}, 16\ns_mul_i32 s{S_T0}, s{C.S_H}, 3\ns_sub_u32 s{C.S_J}, s{R}, s{S_T0}")
    vq, vo, rq, rq2, ro = t, t+1, t+2, t+3, t+4
    lane_rows(a, vq, 3, 12288); lane_rows(a, vo, 3, 1280)
    a(f"s_mul_i32 s{S_T0}, s{S_WAVE}, {16*12288}\ns_lshl_b32 s91, s{R}, 7\ns_add_u32 s91, s91, s{S_T0}")
    a(f"s_lshl_b32 s{S_T0}, s{C.S_J}, 2\ns_add_u32 s{S_T0}, s{S_T0}, s{S_WAVE}\ns_lshl_b32 s{S_T1}, s{S_T0}, 7\ns_mul_i32 s92, s{C.S_H}, {192*1280}\ns_add_u32 s92, s92, s{S_T1}\ns_cmp_lt_u32 s{S_T0}, 10\ns_cselect_b32 s92, s92, {OOB}")
    a(f"s_mul_i32 s93, s{S_WAVE}, 24576\ns_lshl_b32 s94, s{S_WAVE}, 11")
    for k in range(24):
        a(f"s_add_u32 m0, s93, {k*1024}\ns_add_u32 s{S_T1}, s92, {8*k*1280}\nbuffer_load_dwordx4 v{vo}, s[84:87], s{S_T1} offen nt lds")
    slots = [98304, 122880, 0, 24576, 49152, 73728]
    q = ['o']*24
    def dma(u):
        for mi, sr in enumerate((8, 12, 80)):
            for k in range(2):
                a(f"s_add_u32 m0, s94, {slots[u % 6] + mi*8192 + k*1024}\ns_add_u32 s{S_T1}, s91, {(64*u + 8*k)*12288}\nbuffer_load_dwordx4 v{vq}, s[{sr}:{sr+3}], s{S_T1} offen nt lds")
        q.extend([u]*6)
    dma(0); dma(1)
    T = Eng.V_T
    a(f"v_bfe_u32 v{T}, v{V_LANE}, 2, 2\nv_lshlrev_b32 v{T}, 11, v{T}\nv_lshrrev_b32 v{T+1}, 4, v{V_LANE}\nv_lshl_add_u32 v{T}, v{T+1}, 8, v{T}")
    a(f"v_and_b32 v{T+1}, 3, v{V_LANE}\nv_lshl_add_u32 v{T}, v{T+1}, 3, v{T}\ns_lshl_b32 s{S_T0}, s{S_WAVE}, 5\nv_add_u32 v{rq}, s{S_T0}, v{T}\nv_add_u32 v{rq2}, 0x10000, v{rq}\nv_add_u32 v{t+5}, 0x20000, v{rq}")
    a(f"v_bfe_u32 v{T}, v{V_LANE}, 3, 1\nv_lshlrev_b32 v{T}, 5, v{T}\nv_bfe_u32 v{T+1}, v{V_LANE}, 2, 1\nv_add_u32 v{T}, v{T}, v{T+1}")
    a(f"v_bfe_u32 v{T+1}, v{V_LANE}, 4, 1\nv_lshl_add_u32 v{T}, v{T+1}, 4, v{T}\nv_lshrrev_b32 v{T+1}, 5, v{V_LANE}\nv_lshl_add_u32 v{T}, v{T+1}, 2, v{T}")
    a(f"v_lshlrev_b32 v{T}, 7, v{T}\nv_and_b32 v{T+1}, 3, v{V_LANE}\nv_lshl_add_u32 v{T}, v{T+1}, 3, v{T}\nv_add_u32 v{ro}, s93, v{T}")
    for jj in range(3):
        a(f"s_waitcnt vmcnt({len(q) - 8*(jj+1)})")
        for tt in range(4):
            k, b = wob(jj*4 + tt)
            for m, eo in enumerate((0, 2, 8, 10)):
                a(f"ds_read_b64_tr_b16 {k}[{b+2*m}:{b+2*m+1}], v{ro} offset:{jj*8192 + eo*128 + tt*32}")
            if tt % 2: a("s_waitcnt lgkmcnt(0)")
    a("s_barrier")
    stamp(a, 4)
    for u in range(2, 5): dma(u)
    issued = 5
    for u in range(10):
        last = max(i for i, x in enumerate(q) if x == u)
        a(f"s_waitcnt vmcnt({len(q) - 1 - last}) lgkmcnt(0)\ns_barrier")
        if issued < 10: dma(issued); issued += 1
        if u == 4: stamp(a, 5)
        for mi, wb in enumerate((8*u, 80 + 8*u, 160 + 8*u)):
            for m, mo in enumerate((0, 128, 1024, 1152)):
                off = slots[u % 6] + mi*8192 + mo
                a(f"ds_read_b64_tr_b16 a[{wb+2*m}:{wb+2*m+1}], v{(rq, rq2, t+5)[off >> 16]} offset:{off & 0xffff}")
    a("s_waitcnt lgkmcnt(0)")

def role_chain(a, cfg):
    C = Ch; R = S_ROLE; t = C.AL
    CL = 1
    chain_weights(a, cfg)
    a("s_barrier")
    stamp(a, 1, t)
    HM = f"s[{C.S_HALF}:{C.S_HALF+1}]"
    a(f"s_mov_b32 s{C.S_HALF}, 0xcccccccc\ns_mov_b32 s{C.S_HALF+1}, 0xcccccccc")
    a(f"s_mov_b32 s{C.S_SC}, {f32bits(E**-0.5*math.log2(math.e))}\ns_mov_b32 s{C.S_SC+1}, s{C.S_SC}")
    a(f"v_lshlrev_b32 v{C.A16}, 4, v{V_LANE}")
    a(f"v_mov_b32 v{t}, 0x4444\nv_mov_b32 v{t+1}, 0xeeee\nv_cndmask_b32 v{C.IDX}, v{t}, v{t+1}, {HM}")
    a(f"v_bfe_u32 v{t}, v{V_LANE}, 2, 2\nv_and_b32 v{t+1}, 1, v{V_LANE}\nv_lshl_add_u32 v{t}, v{t}, 1, v{t+1}")
    a(f"v_lshrrev_b32 v{t+1}, 4, v{V_LANE}\nv_mov_b32 v{t+6}, {OOB}")
    a(f"v_lshlrev_b32 v{t+2}, 7, v{t+1}\nv_lshl_add_u32 v{C.ALD}, v{t}, 4, v{t+2}")
    a(f"v_cndmask_b32 v{C.KMA}, v{C.ALD}, v{t+6}, {HM}")
    a(f"s_mul_i32 s{S_T3}, s{R}, {AST_}\ns_add_u32 s{S_T3}, s{S_T3}, {ABUF}\ns_lshl_b32 s{S_T1}, s{S_WAVE}, 9")
    a(f"v_lshlrev_b32 v{t+2}, 3, v{V_LANE}\ns_add_u32 s{S_T2}, s{S_T1}, 1536\nv_add_u32 v{C.VLD}, s{S_T2}, v{t+2}\nv_add_u32 v{C.VST}, s{S_T3}, v{C.VLD}")
    a(f"v_lshlrev_b32 v{C.AML}, 2, v{V_LANE}")
    a(f"v_add_u32 v{t+2}, s{S_T3}, v{C.A16}\nv_cndmask_b32 v{t+3}, v{t+2}, v{t+6}, {HM}\nv_cndmask_b32 v{t+4}, v{t+6}, v{t+2}, {HM}")
    a(f"s_cmp_eq_u32 s{S_WAVE}, 1\ns_cselect_b64 vcc, -1, 0\nv_cndmask_b32 v{C.AST}, v{t+6}, v{t+3}, vcc\ns_cmp_eq_u32 s{S_WAVE}, 2\ns_cselect_b64 vcc, -1, 0\nv_cndmask_b32 v{C.AST}, v{C.AST}, v{t+4}, vcc")
    a(f"s_add_u32 s{S_T0}, s{S_T3}, 1024\ns_cmp_eq_u32 s{S_WAVE}, 0\ns_cselect_b32 s{S_T0}, s{S_T0}, {OOB}\nv_add_u32 v{C.ALD}, s{S_T0}, v{C.AML}")
    a(f"s_mul_i32 s{C.S_ABASE}, s{C.S_H}, {3*AST_}\ns_add_u32 s{C.S_ABASE}, s{C.S_ABASE}, {ABUF}\ns_add_u32 s{C.S_A1}, s{C.S_ABASE}, {AST_}\ns_add_u32 s{C.S_A2}, s{C.S_ABASE}, {2*AST_}")
    a(f"v_bfe_u32 v{t+2}, v{V_LANE}, 2, 2\nv_lshlrev_b32 v{t+2}, 14, v{t+2}\nv_lshl_add_u32 v{t+2}, v{t+1}, 6, v{t+2}\nv_and_b32 v{t+3}, 3, v{V_LANE}\nv_lshl_add_u32 v{t+2}, v{t+3}, 4, v{t+2}")
    a(f"s_lshl_b32 s{S_T0}, s{C.S_J}, 2\ns_add_u32 s{S_T0}, s{S_T0}, s{S_WAVE}\ns_lshl_b32 s{S_T1}, s{S_T0}, 16\ns_lshl_b32 s{S_T2}, s{C.S_H}, 8\ns_add_u32 s{S_T1}, s{S_T1}, s{S_T2}")
    a(f"s_cmp_lt_u32 s{S_T0}, 10\ns_cselect_b32 s{S_T1}, s{S_T1}, {OOB}\nv_add_u32 v{C.BST}, s{S_T1}, v{t+2}")
    a(f"s_lshl_b32 s{S_T0}, s{R}, 1\ns_add_u32 s{S_T0}, s{S_T0}, s{S_WAVE}\ns_add_u32 s{S_T1}, s{R}, 64\ns_cmp_lt_u32 s{R}, 64\ns_cselect_b32 s{S_T0}, s{S_T0}, s{S_T1}\ns_cselect_b32 s{S_T1}, 2, 1")
    a(f"s_cmp_lt_u32 s{S_WAVE}, s{S_T1}\ns_cselect_b32 s{C.S_OWN}, 1, 0\ns_cselect_b32 s{S_T0}, s{S_T0}, 0")
    a(f"s_lshr_b32 s{S_T1}, s{S_T0}, 2\ns_and_b32 s{S_T2}, s{S_T0}, 3")
    a(f"s_lshl_b32 s{S_T3}, s{S_T1}, 14\ns_lshl_b32 s{S_T4}, s{S_T2}, 6\ns_add_u32 s{S_T3}, s{S_T3}, s{S_T4}")
    a(f"v_lshrrev_b32 v{t+2}, 2, v{V_LANE}\nv_lshlrev_b32 v{t+2}, 8, v{t+2}\nv_lshl_add_u32 v{t+2}, v{t+3}, 4, v{t+2}\nv_add_u32 v{C.BLD}, s{S_T3}, v{t+2}")
    a(f"s_lshr_b32 s{C.S_MSIG}, s{S_T1}, 2\ns_and_b32 s{S_T1}, s{S_T1}, 3\ns_lshl_b32 s{S_T1}, s{S_T1}, 8\ns_add_u32 s{S_T1}, s{S_T1}, s{S_T4}")
    a(f"s_and_b32 s{S_T3}, s{C.S_MSIG}, 7\ns_lshl_b32 s{S_T3}, s{S_T3}, 10\ns_add_u32 s{S_T1}, s{S_T1}, s{S_T3}")
    a(f"v_and_b32 v{t+2}, 1, v{t+1}\nv_lshlrev_b32 v{t+2}, 1, v{t+2}\nv_lshrrev_b32 v{t+3}, 1, v{t+1}\nv_add_u32 v{t+2}, v{t+2}, v{t+3}\nv_lshlrev_b32 v{t+2}, 2, v{t+2}\nv_lshl_add_u32 v{t+2}, v{t}, 4, v{t+2}")
    a(f"v_add_u32 v{t+2}, s{S_T1}, v{t+2}\nv_and_b32 v{t+3}, 10, v{V_LANE}\nv_cmp_eq_u32 vcc, 0, v{t+3}\nv_cndmask_b32 v{C.MST}, v{t+6}, v{t+2}, vcc")
    a(f"v_and_b32 v{t+2}, 15, v{V_LANE}")
    for r in range(4):
        a(f"v_mov_b32 v{C.SEL+r}, 0\nv_mov_b32 v{t+3}, 0x3f80\nv_cmp_eq_u32 vcc, {2*r}, v{t+2}\nv_cndmask_b32 v{C.SEL+r}, v{C.SEL+r}, v{t+3}, vcc")
        a(f"v_mov_b32 v{t+3}, 0x3f800000\nv_cmp_eq_u32 vcc, {2*r+1}, v{t+2}\nv_cndmask_b32 v{C.SEL+r}, v{C.SEL+r}, v{t+3}, vcc")
    a(f"s_lshl_b32 s{S_T0}, s{S_WAVE}, 9\nv_lshlrev_b32 v{C.LQW}, 5, v{t+2}\nv_lshl_add_u32 v{C.LQW}, v{t+1}, 3, v{C.LQW}\nv_add_u32 v{C.LQW}, s{S_T0}, v{C.LQW}")
    a(f"v_lshlrev_b32 v{t+3}, 9, v{t+1}\nv_lshl_add_u32 v{C.KDA}, v{t+2}, 4, v{t+3}")
    a(f"s_lshr_b32 s{S_T0}, s{S_WAVE}, 1\ns_lshl_b32 s{S_T0}, s{S_T0}, 10\ns_and_b32 s{S_T1}, s{S_WAVE}, 1\ns_lshl_b32 s{S_T1}, s{S_T1}, 3\ns_add_u32 s{S_T0}, s{S_T0}, s{S_T1}\ns_add_u32 s{S_T0}, s{S_T0}, {LO}\nv_add_u32 v{C.LOW}, s{S_T0}, v{C.A16}")
    a(f"v_bfe_u32 v{t+3}, v{V_LANE}, 1, 1\nv_lshl_add_u32 v{C.LOR}, v{t+3}, 10, v{C.A16}\nv_add_u32 v{C.LOR}, {LO}, v{C.LOR}")
    a(f"s_lshl_b32 s{S_T0}, s{S_WAVE}, 10\ns_add_u32 s{S_T0}, s{S_T0}, {LMEM}\nv_add_u32 v{C.LMW}, s{S_T0}, v{C.A16}\ns_lshl_b32 s{S_T0}, s{S_WAVE}, 2\nv_add_u32 v{C.VMA}, s{S_T0}, v{C.A16}")
    a(f"s_mov_b32 s{S_T0}, 0")
    tr_addr(a, C.LTR, 5, 3, S_T0)
    a(f"s_lshl_b32 s{S_T0}, s{R}, 7\ns_add_u32 s{C.S_T1F}, s{S_T0}, {F_T1}\ns_add_u32 s{S_T0}, s{S_T0}, {F_CH}\ns_cmp_eq_u32 s{S_WAVE}, 3\ns_cselect_b32 s{S_T0}, s{S_T0}, {OOB}")
    a(f"v_mov_b32 v{C.FLA}, s{S_T0}\nv_cmp_eq_u32 vcc, 0, v{V_LANE}\nv_cndmask_b32 v{C.FLA}, v{t+6}, v{C.FLA}, vcc")
    a(f"s_lshl_b32 s{C.S_KV}, s{R}, 12\ns_mul_i32 s{C.S_VH}, s{C.S_H}, 12288\ns_lshl_b32 s{C.S_KMO}, s{R}, 10\ns_mov_b32 s{C.S_SEEN}, {64 if cfg.get('solo') else 0}\ns_mov_b32 s{C.S_S}, 0")
    a(f"s_mul_i32 s{S_T0}, s{C.S_H}, 384\ns_add_u32 s{C.S_T1F}, s{S_T0}, {F_T1}")
    for r in [C.PP+5, C.VMR+1, C.VMR+3, C.VMR+5] + list(range(C.DQ, C.DQ+12)) + list(range(C.AO, C.AO+16)): a(f"v_mov_b32 v{r}, 0")
    if not cfg.get("solo"): poll_dbg_ge(a, DBG_INIT, 64, t)
    a(f"s_mul_i32 s{S_T0}, s{R}, 2731\ns_lshr_b32 s{S_T0}, s{S_T0}, 16")
    a(f"s_mul_i32 s{S_T1}, s{S_T0}, 24\ns_sub_u32 s{S_T1}, s{R}, s{S_T1}\ns_sub_u32 s{S_T1}, s{S_T1}, s{C.S_J}\ns_add_u32 s{S_T3}, s{S_T1}, 3")
    a(f"s_and_b32 s{S_T1}, s{S_T0}, 1\ns_lshl_b32 s{S_T1}, s{S_T1}, 7\ns_lshr_b32 s{S_T0}, s{S_T0}, 1\ns_lshl_b32 s{S_T0}, s{S_T0}, 2\ns_add_u32 s{S_T0}, s{S_T0}, s{S_T1}\nv_mov_b32 v{t}, s{S_T0}")
    a(f"global_load_dword v{t+1}, v{t}, s[{P_DBG}:{P_DBG+1}] sc1\nv_lshlrev_b32 v{t+2}, 7, v{V_LANE}\nv_add_u32 v{t+2}, {F_PAR}, v{t+2}")
    a(f"buffer_load_dword v{t+3}, v{t+2}, s[4:7], 0 offen sc1\ns_waitcnt vmcnt(0)")
    a(f"v_readfirstlane_b32 s{S_T0}, v{t+1}\ns_cmp_ge_u32 s{S_T0}, s{S_T3}\ns_cselect_b32 s{C.S_MODE}, 1, 0")
    if cfg.get("safe"): a(f"s_mov_b32 s{C.S_MODE}, 0")
    for k, (sr, base) in enumerate(((C.S_PM, R_MEM), (C.S_BB, R_B0))):
        a(f"v_readlane_b32 s{sr}, v{t+3}, {k}\ns_and_b32 s{sr}, s{sr}, 1\ns_lshl_b32 s{sr}, s{sr}, 13\ns_add_u32 s{sr}, s{sr}, {base}")
    a(f"s_add_u32 s{C.S_B4}, s{C.S_BB}, 4096")
    def mem_offsets():
        a(f"s_lshl_b32 s{C.S_MEM}, s{C.S_S}, 14\ns_add_u32 s{C.S_MEM}, s{C.S_MEM}, s{C.S_PM}\ns_add_u32 s{C.S_M4}, s{C.S_MEM}, 4096")
        a(f"s_lshr_b32 s{C.S_MEMX}, s{C.S_S}, 2\ns_add_u32 s{C.S_MEMX}, s{C.S_MEMX}, 64\ns_lshl_b32 s{C.S_MEMX}, s{C.S_MEMX}, 14\ns_and_b32 s{S_T0}, s{C.S_S}, 3\ns_lshl_b32 s{S_T0}, s{S_T0}, 11")
        a(f"s_add_u32 s{C.S_MEMX}, s{C.S_MEMX}, s{S_T0}\ns_add_u32 s{C.S_MEMX}, s{C.S_MEMX}, s{C.S_PM}")
        if CL:
            a(f"s_lshl_b32 s{S_T0}, s{S_WAVE}, 10\ns_add_u32 s{C.S_C1}, s{C.S_MEM}, s{S_T0}\ns_add_u32 s{C.S_C2}, s{C.S_M4}, s{S_T0}\ns_add_u32 s{C.S_C3}, s{C.S_MEMX}, s{S_T0}")
            a(f"s_cmp_lt_u32 s{S_WAVE}, 2\ns_cselect_b32 s{C.S_C3}, s{C.S_C3}, {OOB}")
    mem_offsets()
    M = C.MEMR; AL = C.AL; T_, T1 = C.T, C.T + 1
    VN = M + 12
    def wait_t1():
        Lok = a.label("pf"); Lp = a.label("pfp")
        a(f"s_cmp_gt_u32 s{C.S_SEEN}, s{S_T4}\ns_cbranch_scc1 {Lok}")
        a(f"s_mov_b32 s{S_SPIN}, 0\nv_min_u32 v{C.T}, 2, v{V_LANE}\nv_lshl_add_u32 v{C.T}, v{C.T}, 7, s{C.S_T1F}")
        a(f"{Lp}:\nbuffer_load_dword v{C.T+1}, v{C.T}, s[4:7], 0 offen sc1")
        spin_fail(a, Lok)
        a(f"s_waitcnt vmcnt(0)\nv_readlane_b32 s{C.S_SEEN}, v{C.T+1}, 0\nv_readlane_b32 s{S_T0}, v{C.T+1}, 1\nv_readlane_b32 s{S_T1}, v{C.T+1}, 2")
        a(f"s_min_u32 s{C.S_SEEN}, s{C.S_SEEN}, s{S_T0}\ns_min_u32 s{C.S_SEEN}, s{C.S_SEEN}, s{S_T1}\ns_cmp_gt_u32 s{C.S_SEEN}, s{S_T4}\ns_cbranch_scc1 {Lok}\ns_sleep 2\ns_branch {Lp}")
        a(f"{Lok}:")
    def side_offsets():
        a(f"s_mul_i32 s{S_T0}, s{S_T4}, {32*12288}\ns_add_u32 s{C.S_PV}, s{S_T0}, s{C.S_VH}\ns_add_u32 s{C.S_PK}, s{S_T0}, s{C.S_KV}\ns_add_u32 s{C.S_PV1}, s{C.S_PV}, 4096\ns_add_u32 s{C.S_PV2}, s{C.S_PV}, 8192")
        a(f"s_mul_i32 s{S_T0}, s{C.S_S}, {32*3072}\ns_add_u32 s{S_T0}, s{S_T0}, s{C.S_KMO}\ns_add_u32 s{C.S_OVM}, s{S_T0}, {VM}\ns_add_u32 s{C.S_OKM}, s{S_T0}, {KM}\ns_cmp_eq_u32 s{S_WAVE}, 3\ns_cselect_b32 s{C.S_OKM}, s{C.S_OKM}, {OOB}")
    def kloads(): return [f"buffer_load_dwordx4 v[{C.KXR+4*u}:{C.KXR+4*u+3}], v{C.KDA}, s[4:7], s{C.S_PK} offen offset:{u*2048} sc1" for u in range(2)]
    def vloadsx(): return [f"buffer_load_dwordx4 v[{VN+4*jj}:{VN+4*jj+3}], v{C.A16}, s[4:7], s{so} offen sc1" for jj, so in enumerate((C.S_PV, C.S_PV1, C.S_PV2))]
    def kmvm(): return [f"buffer_store_dword v{C.T+2}, v{C.VMA}, s[4:7], s{C.S_OVM} offen sc1",
                        f"buffer_store_dwordx4 v[{C.KXR}:{C.KXR+3}], v{C.KMA}, s[4:7], s{C.S_OKM} offen sc1",
                        f"buffer_store_dwordx4 v[{C.KXR+4}:{C.KXR+7}], v{C.KMA}, s[4:7], s{C.S_OKM} offen offset:512 sc1"]
    a(f"s_lshl_b32 s{S_T0}, s{S_WAVE}, 10\ns_add_u32 s{C.S_VH}, s{C.S_VH}, s{S_T0}\ns_add_u32 s{C.S_VH}, s{C.S_VH}, {VX}")
    a(f"s_sub_u32 s{S_T0}, s{S_WAVE}, 1\ns_lshl_b32 s{S_T1}, s{S_T0}, 8\ns_add_u32 s{C.S_KV}, s{C.S_KV}, s{S_T1}\ns_add_u32 s{C.S_KV}, s{C.S_KV}, {KX}\ns_cmp_lt_u32 s{S_T0}, 2\ns_cselect_b32 s{C.S_KV}, s{C.S_KV}, {OOB}")
    a(f"s_mov_b32 s{C.S_NXT}, 1")
    a(f"v_min_u32 v{C.TFA}, 2, v{V_LANE}\nv_lshl_add_u32 v{C.TFA}, v{C.TFA}, 7, s{C.S_T1F}")
    stamp(a, 2, C.T)
    Lstep = a.label("step"); Lfinal = a.label("final"); Ldone = a.label("chdone")
    sm = lambda d, A, B: f"v_smfmac_f32_16x16x64_bf16 v[{d}:{d+3}], v[{A}:{A+3}], {B}, v{C.IDX}"
    if cfg.get("sprof"):
        for i in range(16): a(f"s_mov_b32 s{16+i}, 0")
        a("s_memtime s[96:97]\ns_waitcnt lgkmcnt(0)\ns_mov_b32 s99, s96")
    a(f"{Lstep}:")
    sp(a, 0)
    if cfg.get("tser"):
        L = a.label("ts")
        a(f"s_cmp_lg_u32 s{S_WAVE}, 3\ns_cbranch_scc1 {L}\ns_memrealtime s[96:97]\ns_lshl_b32 s98, s{R}, 6\ns_add_u32 s98, s98, s{C.S_S}\ns_lshl_b32 s98, s98, 2\ns_add_u32 s98, s98, {PROF + 2*MB}")
        a(f"s_waitcnt lgkmcnt(0)\nv_mov_b32 v{C.T}, s96\nv_mov_b32 v{C.T+1}, 0\ns_mov_b64 exec, 1\nbuffer_store_dword v{C.T}, v{C.T+1}, s[4:7], s98 offen\ns_mov_b64 exec, -1\n{L}:")
    a(f"s_mov_b32 s{S_SPIN}, 0")
    stubs = []
    if CL:
        Lc = a.label("cp"); Lck = a.label("cpk")
        def cissue(b):
            for k, so in enumerate((C.S_C1, C.S_C2, C.S_C3)): a(f"buffer_load_dwordx4 v[{b+4*k}:{b+4*k+3}], v{C.A16}, s[4:7], s{so} offen sc1")
        def ccheck(b0, rem):
            for k in range(3):
                b = b0 + 4*k
                a(f"s_waitcnt vmcnt({2-k+rem})\nds_write_b128 v{C.LMW}, v[{b}:{b+3}] offset:{4096*k}")
                if k == 0: a(f"v_max3_u32 v{T_}, v{b}, v{b+1}, v{b+2}\nv_max_u32 v{T_}, v{T_}, v{b+3}")
                else: a(f"v_max3_u32 v{T_}, v{T_}, v{b}, v{b+1}\nv_max3_u32 v{T_}, v{T_}, v{b+2}, v{b+3}")
            a(f"v_cmp_eq_u32 vcc, -1, v{T_}")
        if cfg.get("pipeC"):
            cissue(AL)
            backoff(a, cfg["pipeC"])
            a(f"{Lc}:")
            cissue(AL + 12); ccheck(AL, 3)
            a(f"s_cbranch_vccz {Lck}")
            cnt(a, 8)
            cissue(AL); ccheck(AL + 12, 3)
            a(f"s_cbranch_vccz {Lck}")
            cnt(a, 8)
            spin_fail(a, Ldone)
            a(f"s_branch {Lc}\n{Lck}:")
        else:
            a(f"{Lc}:")
            cissue(AL)
            cnt(a, 8)
            spin_fail(a, Ldone)
            ccheck(AL, 0)
            a(f"s_cbranch_vccnz {Lc}")
        a("s_waitcnt lgkmcnt(0)\ns_barrier")
        for sg in range(10): a(f"ds_read_b128 v[{M+4*sg}:{M+4*sg+3}], v{C.A16} offset:{LMEM + sg*1024}")
        for sg in range(10):
            a(f"s_waitcnt lgkmcnt({9-sg})")
            a(sm(C.DQ, M + 4*sg, wq(sg))); a(sm(C.DK, M + 4*sg, wk(sg)))
    else:
        def cload(sg):
            so = C.S_MEM if sg < 4 else (C.S_M4 if sg < 8 else C.S_MEMX)
            return f"buffer_load_dwordx4 v[{M+4*sg}:{M+4*sg+3}], v{C.A16}, s[4:7], s{so} offen offset:{(sg % 4)*1024} sc1"
        for sg in range(10): a(cload(sg))
        Lcc = [a.label("cc") for _ in range(10)]; Lcr = [a.label("cr") for _ in range(10)]
        for sg in range(10):
            m = M + 4*sg
            a(f"{Lcc[sg]}:\ns_waitcnt vmcnt({9-sg})")
            a(f"v_max3_u32 v{T_}, v{m}, v{m+1}, v{m+2}\nv_max_u32 v{T_}, v{T_}, v{m+3}\nv_cmp_eq_u32 vcc, -1, v{T_}\ns_cbranch_vccnz {Lcr[sg]}")
            a(sm(C.DQ, m, wq(sg))); a(sm(C.DK, m, wk(sg)))
        def cstubs():
            for sg in range(10):
                a(f"{Lcr[sg]}:\ns_waitcnt vmcnt(0)")
                cnt(a, 8)
                for k in range(sg, 10): a(cload(k))
                a(f"s_add_u32 s{S_SPIN}, s{S_SPIN}, 1\ns_cmp_le_u32 s{S_SPIN}, {SPIN_MAX}\ns_cbranch_scc1 {Lcc[sg]}\ns_branch {Ldone}")
        stubs.append(cstubs)
    fs(a, 0)
    sp(a, 1)
    G16 = cfg.get("g16", 0)
    Lv = lambda sg: sm(C.DV, M + 4*sg, wv(sg))
    a(Lv(0)); a(Lv(1))
    if cfg.get("pipeC"): a("s_waitcnt vmcnt(0)")
    a(f"s_and_b32 s{C.S_TAG}, s{C.S_S}, 1\ns_lshl_b32 s{C.S_TAG}, 1, s{C.S_TAG}")
    a(f"v_pk_add_f32 v[{C.DQ}:{C.DQ+1}], v[{C.DQ}:{C.DQ+1}], v[{C.DQ+2}:{C.DQ+3}]")
    a(f"v_pk_add_f32 v[{C.DK}:{C.DK+1}], v[{C.DK}:{C.DK+1}], v[{C.DK+2}:{C.DK+3}]")
    a(f"v_pk_mul_f32 v[{C.DQ}:{C.DQ+1}], v[{C.DQ}:{C.DQ+1}], s[{C.S_SC}:{C.S_SC+1}]")
    a(f"v_cvt_pk_bf16_f32 v{AL+2}, v{C.DK}, v{C.DK+1}\nv_cvt_pk_bf16_f32 v{AL+3}, v{C.DK}, v{C.DK+1}")
    a(f"ds_write_b64 v{C.LQW}, v[{AL+2}:{AL+3}] offset:{LK}")
    a(f"v_cvt_pk_bf16_f32 v{AL}, v{C.DQ}, v{C.DQ+1}\nv_cvt_pk_bf16_f32 v{AL+1}, v{C.DQ}, v{C.DQ+1}")
    a(f"ds_write_b64 v{C.LQW}, v[{AL}:{AL+1}] offset:{LQ}")
    fs(a, 1)
    n1 = cfg.get("nv1", 3)
    for k in range(2, 2 + n1): a(Lv(k))
    L0 = a.label("first"); L02 = a.label("first2")
    a(f"s_cmp_eq_u32 s{C.S_S}, 0\ns_cbranch_scc1 {L0}\n{L02}:\ns_sub_u32 s{S_T0}, s{S_WAVE}, 1\ns_cmp_lt_u32 s{S_T0}, 2")
    def fstub():
        a(f"{L0}:\ns_mov_b32 s{S_T4}, 0")
        wait_t1(); side_offsets()
        for x in kloads(): a(x)
        for jj, so in enumerate((C.S_PV, C.S_PV1, C.S_PV2)): a(f"buffer_load_dwordx4 v[{C.VXR+4*jj}:{C.VXR+4*jj+3}], v{C.A16}, s[4:7], s{so} offen sc1")
        a(f"s_mov_b32 s{S_T4}, 1")
        side_offsets()
        a(f"s_waitcnt vmcnt(0)\ns_branch {L02}")
    stubs.append(fstub)
    a(f"s_waitcnt lgkmcnt(0)\ns_barrier")
    fs(a, 2)
    for u in range(2):
        for m in range(2): a(f"ds_read_b64_tr_b16 v[{C.QOP+4*u+2*m}:{C.QOP+4*u+2*m+1}], v{C.LTR} offset:{LQ + u*1024 + m*128}")
    Lnk = a.label("nk")
    a(f"s_cbranch_scc1 {Lnk}")
    for u in range(2):
        for m in range(2): a(f"ds_read_b64_tr_b16 v[{C.KXR+4*u+2*m}:{C.KXR+4*u+2*m+1}], v{C.LTR} offset:{LK + u*1024 + m*128}")
    a(f"{Lnk}:")
    for k in range(2 + n1, 10): a(Lv(k))
    a("s_waitcnt lgkmcnt(0)")
    fs(a, 3)
    a(f"v_mfma_f32_16x16x32_bf16 v[{C.SD}:{C.SD+3}], v[{C.KXR}:{C.KXR+3}], v[{C.QOP}:{C.QOP+3}], 0")
    a(f"v_mfma_f32_16x16x32_bf16 v[{C.SD}:{C.SD+3}], v[{C.KXR+4}:{C.KXR+7}], v[{C.QOP+4}:{C.QOP+7}], v[{C.SD}:{C.SD+3}]")
    a(f"s_cmp_eq_u32 s{C.S_MODE}, 0")
    for r in range(4): a(f"v_mov_b32 v{C.DQ+r}, 0")
    a(f"v_pk_add_f32 v[{C.DV}:{C.DV+1}], v[{C.DV}:{C.DV+1}], v[{C.DV+2}:{C.DV+3}]")
    a(f"v_bfi_b32 v{C.DV+2}, 3, s{C.S_TAG}, v{C.DV}\nv_bfi_b32 v{C.DV+3}, 3, s{C.S_TAG}, v{C.DV+1}")
    for r in range(4): a(f"v_bfi_b32 v{C.SD+r}, 3, s{C.S_TAG}, v{C.SD+r}")
    a(f"v_cndmask_b32 v{T_}, v{C.SD}, v{C.SD+1}, {HM}")
    Ls = a.label("as"); Ls2 = a.label("as2")
    def apub(fl):
        a(f"buffer_store_dwordx4 v[{C.SD}:{C.SD+3}], v{C.AST}, s[4:7], 0 offen {fl}")
        a(f"buffer_store_dword v{T_}, v{C.ALD}, s[4:7], 0 offen {fl}")
        a(f"buffer_store_dwordx2 v[{C.DV+2}:{C.DV+3}], v{C.VST}, s[4:7], 0 offen {fl}")
    a(f"s_cbranch_scc1 {Ls}")
    apub("")
    a(f"{Ls2}:")
    stubs.append(lambda: (a(f"{Ls}:"), apub("sc1"), a(f"s_branch {Ls2}")))
    fs(a, 4)
    sp(a, 2)
    a(f"v_cvt_pk_bf16_f32 v{C.T+2}, v{C.DV}, v{C.DV+1}")
    a(f"s_cmp_eq_u32 s{C.S_S}, {NSEG-1}\ns_cbranch_scc1 {Lfinal}")
    for r in range(4, 12): a(f"v_mov_b32 v{C.DQ+r}, 0")
    backoff(a, cfg.get("dA", 0))
    La = a.label("ap"); Lax = a.label("apx"); Lvp = a.label("vp"); Lvr = a.label("vpr"); Lvx = a.label("vpx")
    aso = (C.S_ABASE, C.S_A1, C.S_A2)
    V = C.VL
    def vloads():
        for j in range(3): a(f"buffer_load_dwordx2 v[{V+2*j}:{V+2*j+1}], v{C.VLD}, s[4:7], s{aso[j]} offen sc1")
    a(f"s_mov_b32 s{S_SPIN}, 0\n{La}:")
    for j in range(3): a(f"buffer_load_dwordx4 v[{AL+4*j}:{AL+4*j+3}], v{C.A16}, s[4:7], s{aso[j]} offen sc1")
    for j in range(3): a(f"buffer_load_dword v{AL+12+j}, v{C.AML}, s[4:7], s{aso[j]} offen offset:1024 sc1")
    vloads()
    cnt(a, 9)
    spin_fail(a, Lax)
    a("s_waitcnt vmcnt(7)")
    if G16: a(f"v_and_b32 v{T_}, v{AL}, v{AL+4}")
    else: a(f"v_bitop3_b32 v{T_}, v{AL}, v{AL+1}, v{AL+2} bitop3:0x80\nv_bitop3_b32 v{T_}, v{T_}, v{AL+3}, v{AL+4} bitop3:0x80\nv_bitop3_b32 v{T_}, v{T_}, v{AL+5}, v{AL+6} bitop3:0x80\nv_and_b32 v{T_}, v{T_}, v{AL+7}")
    for k in range(2): a(f"v_pk_add_f32 v[{AL+2*k}:{AL+2*k+1}], v[{AL+2*k}:{AL+2*k+1}], v[{AL+4+2*k}:{AL+5+2*k}]")
    a("s_waitcnt vmcnt(6)")
    if G16: a(f"v_bitop3_b32 v{T_}, v{T_}, v{AL+8}, s{C.S_TAG} bitop3:0x80")
    else: a(f"v_bitop3_b32 v{T_}, v{T_}, v{AL+8}, v{AL+9} bitop3:0x80\nv_bitop3_b32 v{T_}, v{T_}, v{AL+10}, v{AL+11} bitop3:0x80\nv_and_b32 v{T_}, s{C.S_TAG}, v{T_}")
    for k in range(2): a(f"v_pk_add_f32 v[{AL+2*k}:{AL+2*k+1}], v[{AL+2*k}:{AL+2*k+1}], v[{AL+8+2*k}:{AL+9+2*k}]")
    a(f"v_max3_f32 v{T1}, v{AL}, v{AL+1}, v{AL+2}")
    a("s_waitcnt vmcnt(3)")
    a(f"v_bitop3_b32 v{AL+15}, v{AL+12}, v{AL+13}, v{AL+14} bitop3:0x80\nv_add_f32 v{AL+4}, v{AL+12}, v{AL+13}\nv_and_b32 v{T_}, v{T_}, v{AL+15}\nv_add_f32 v{AL+4}, v{AL+4}, v{AL+14}\nv_cmp_eq_u32 vcc, 0, v{T_}")
    a(f"v_max3_f32 v{T1}, v{T1}, v{AL+3}, v{AL+4}")
    Lar = a.label("apr")
    a(f"s_cbranch_vccnz {Lar}\n{Lax}:")
    stubs.append(lambda: a(f"{Lar}:\ns_waitcnt vmcnt(0)\ns_branch {La}"))
    fs(a, 5)
    sp(a, 3)
    side = []
    if not cfg.get("nokm"): side += kmvm()
    if not cfg.get("nopf"): side += kloads() + vloadsx()
    side += [f"buffer_load_dword v{C.TFV}, v{C.TFA}, s[4:7], 0 offen sc1"]
    Lg = a.label("t1g"); Lg2 = a.label("t1g2")
    a(f"s_cmp_gt_u32 s{C.S_SEEN}, s{C.S_NXT}\ns_cbranch_scc0 {Lg}\n{Lg2}:")
    def gstub():
        a(f"{Lg}:\nv_mov_b32 v{AL+15}, v{T1}\ns_mov_b32 s{S_T4}, s{C.S_NXT}")
        wait_t1()
        a(f"v_mov_b32 v{T1}, v{AL+15}\ns_waitcnt vmcnt(0)\ns_branch {Lg2}")
    stubs.append(gstub)
    NS_ = len(side); side = list(side)
    def sd(n=1):
        for _ in range(n):
            if side: a(side.pop(0))
    T2 = AL + 6
    QP = lambda p: f"quad_perm:[{p}] row_mask:0xf bank_mask:0xf"
    a(f"v_max_f32_dpp v{T_}, v{T1}, v{T1} {QP('2,3,0,1')}")
    a(f"v_max_f32_dpp v{T2}, v{T1}, v{T1} {QP('2,3,0,1')}")
    sd(2)
    a(f"v_permlane32_swap_b32 v{T_}, v{T2}\nv_max_f32 v{T1}, v{T_}, v{T2}\nv_max_f32 v{T_}, v{T_}, v{T2}")
    sd(2)
    a(f"v_permlane16_swap_b32 v{T_}, v{T1}\nv_max_f32 v{T2}, v{T_}, v{T1}")
    for k in range(2): a(f"v_pk_add_f32 v[{AL+2*k}:{AL+2*k+1}], v[{AL+2*k}:{AL+2*k+1}], v[{T2}:{T2+1}] op_sel_hi:[1,0] neg_lo:[0,1] neg_hi:[0,1]")
    a(f"v_exp_f32 v{AL}, v{AL}\nv_exp_f32 v{AL+1}, v{AL+1}\nv_sub_f32 v{AL+4}, v{AL+4}, v{T2}\nv_exp_f32 v{AL+2}, v{AL+2}\nv_exp_f32 v{AL+3}, v{AL+3}")
    a(f"v_cvt_pk_bf16_f32 v{AL+8}, v{AL}, v{AL+1}\nv_exp_f32 v{AL+4}, v{AL+4}\nv_cvt_pk_bf16_f32 v{AL+9}, v{AL+2}, v{AL+3}")
    PP = C.PP
    sd(1)
    a(f"v_mov_b32_dpp v{PP}, v{AL+8} {QP('0,1,0,1')}\nv_mov_b32_dpp v{PP+2}, v{AL+8} {QP('2,3,2,3')}")
    a(f"v_mov_b32_dpp v{PP+1}, v{AL+9} {QP('0,1,0,1')}\nv_mov_b32_dpp v{PP+3}, v{AL+9} {QP('2,3,2,3')}")
    a(f"v_mov_b32_dpp v{AL+10}, v{AL+4} {QP('0,1,0,1')}\nv_mov_b32_dpp v{AL+11}, v{AL+4} {QP('2,3,2,3')}")
    OD = M
    pvx = lambda jj: f"v_mfma_f32_16x16x32_bf16 v[{OD+4*jj}:{OD+4*jj+3}], v[{C.VXR+4*jj}:{C.VXR+4*jj+3}], v[{PP}:{PP+3}], 0"
    pvm = lambda jj: f"v_mfma_f32_16x16x16_bf16 v[{OD+4*jj}:{OD+4*jj+3}], v[{C.VMR+2*jj}:{C.VMR+2*jj+1}], v[{PP+4}:{PP+5}], v[{OD+4*jj}:{OD+4*jj+3}]"
    fs(a, 6)
    nside_before = NS_ - len(side)
    a(pvx(0))
    a(f"v_cvt_pk_bf16_f32 v{PP+4}, v{AL+10}, v{AL+11}\ns_waitcnt vmcnt({nside_before})")
    def vcheck():
        a(f"v_bitop3_b32 v{T_}, v{V}, v{V+1}, v{V+2} bitop3:0x80\nv_bitop3_b32 v{T1}, v{V+3}, v{V+4}, v{V+5} bitop3:0x80\nv_bitop3_b32 v{T_}, v{T_}, v{T1}, s{C.S_TAG} bitop3:0x80\nv_cmp_eq_u32 vcc, 0, v{T_}")
    def vcvt(k): a(f"v_cvt_pk_bf16_f32 v{C.VMR+2*k}, v{V+2*k}, v{V+2*k+1}")
    a(pvx(1))
    vcheck()
    a(pvx(2))
    vcvt(0); vcvt(1); vcvt(2)
    a(f"s_cbranch_vccnz {Lvr}\n{Lvx}:")
    def vstub():
        a(f"{Lvr}:")
        vloads(); cnt(a, 11)
        a("s_waitcnt vmcnt(0)")
        vcheck(); vcvt(0); vcvt(1); vcvt(2)
        a(f"s_add_u32 s{S_SPIN}, s{S_SPIN}, 1\ns_cmp_gt_u32 s{S_SPIN}, {SPIN_MAX}\ns_cbranch_scc1 {Lvx}\ns_cbranch_vccnz {Lvr}\ns_branch {Lvx}")
    stubs.append(vstub)
    fs(a, 7)
    a(pvm(0)); sd(2)
    a(pvm(1)); sd(2)
    a(pvm(2)); sd(19)
    a(f"v_pk_add_f32 v[{AL}:{AL+1}], v[{AL}:{AL+1}], v[{AL+2}:{AL+3}]\nv_add_f32 v{AL+4}, v{AL+4}, v{AL}\nv_add_f32 v{AL+4}, v{AL+4}, v{AL+1}")
    for jj in range(3):
        d = OD + 4*jj; e = AL + 8 + 2*jj
        for x in cvt4(e, d): a(x)
        a(f"ds_write_b64 v{C.LOW}, v[{e}:{e+1}] offset:{jj*2048}")
    a(f"v_add_f32_dpp v{T_}, v{AL+4}, v{AL+4} {QP('2,3,0,1')}\nv_add_f32_dpp v{T1}, v{AL+4}, v{AL+4} {QP('2,3,0,1')}")
    fs(a, 8)
    a("s_waitcnt lgkmcnt(0)\ns_barrier")
    for jj in range(3): a(f"ds_read_b128 v[{C.OPR+4*jj}:{C.OPR+4*jj+3}], v{C.LOR} offset:{jj*2048}")
    fs(a, 9)
    a(f"v_permlane32_swap_b32 v{T_}, v{T1}\nv_add_f32 v{T2}, v{T_}, v{T1}\nv_add_f32 v{T_}, v{T_}, v{T1}\nv_permlane16_swap_b32 v{T_}, v{T2}\nv_add_f32 v{T_}, v{T_}, v{T2}\nv_rcp_f32 v{T_}, v{T_}")
    BP = AL + 8
    bc = [f"v_mov_b32_dpp v{C.RL+b}, v{T_} row_newbcast:{4*g+b} row_mask:{1 << g:#x} bank_mask:0xf" for g in range(4) for b in range(2)]
    for jj in range(3):
        a(f"s_waitcnt lgkmcnt({2-jj})")
        for tt in range(4):
            a(sm(C.AO + 4*tt, C.OPR + 4*jj, wo(jj*4 + tt)))
            if jj >= 1 and bc: a(bc.pop(0))
    for tt in range(4):
        d = C.AO + 4*tt
        a(f"v_pk_add_f32 v[{d}:{d+1}], v[{d}:{d+1}], v[{d+2}:{d+3}]\nv_pk_mul_f32 v[{d}:{d+1}], v[{d}:{d+1}], v[{C.RL}:{C.RL+1}]\nv_cvt_pk_bf16_f32 v{BP+tt}, v{d}, v{d+1}")
        if tt % 2 == 0: a(f"v_bfi_b32 v{BP+tt}, 1, s{C.S_S}, v{BP+tt}")
    a(f"buffer_store_dwordx4 v[{BP}:{BP+3}], v{C.BST}, s[4:7], s{C.S_BB} offen sc1")
    fs(a, 10)
    sp(a, 4)
    Lb3 = a.label("b3")
    if cfg.get("fine"):
        L = a.label("fd")
        a(f"s_cmp_lg_u32 s{C.S_S}, {cfg['fine']}\ns_cbranch_scc1 {L}\ns_waitcnt lgkmcnt(0)\ns_lshl_b32 s98, s{R}, 2\ns_add_u32 s98, s98, s{S_WAVE}\ns_lshl_b32 s98, s98, 6\ns_add_u32 s98, s98, {PROF + 3*MB}\nv_mov_b32 v{C.T+1}, 0\ns_mov_b64 exec, 1")
        for i in range(12): a(f"v_mov_b32 v{C.T}, s{16+2*i}\nbuffer_store_dword v{C.T}, v{C.T+1}, s[4:7], s98 offen offset:{4*i}")
        a(f"s_mov_b64 exec, -1\n{L}:")
    a(f"s_add_u32 s{C.S_S}, s{C.S_S}, 1\ns_not_b32 s{S_T3}, s{C.S_S}")
    for r in range(16): a(f"v_mov_b32 v{C.AO+r}, 0")
    mem_offsets()
    Lno = a.label("nown")
    a(f"s_cmp_eq_u32 s{C.S_OWN}, 0\ns_cbranch_scc1 {Lno if cfg.get('nobar3') else Lb3}")
    if cfg.get("nobar3"): stubs.append(lambda: a(f"{Lno}:\ns_sleep {cfg['nobar3']}\ns_branch {Lb3}"))
    backoff(a, cfg.get("dB", 0))
    Lb = a.label("bp"); Lbx = a.label("bpx")
    a(f"s_cmp_lt_u32 s{C.S_MSIG}, 8\ns_cselect_b32 s{S_T4}, s{C.S_MEM}, s{C.S_MEMX}\ns_mov_b32 s{S_SPIN}, 0")
    def bissue(b0):
        for L, so in enumerate((C.S_BB, C.S_B4)): a(f"buffer_load_dwordx4 v[{b0+4*L}:{b0+4*L+3}], v{C.BLD}, s[4:7], s{so} offen sc1")
    def bcheck(b0, rem):
        for L in range(2):
            b = b0 + 4*L
            a(f"s_waitcnt vmcnt({1-L+rem})")
            a(f"v_mfma_f32_16x16x32_bf16 v[{C.SD}:{C.SD+3}], v[{b}:{b+3}], v[{C.SEL}:{C.SEL+3}], {'0' if L == 0 else f'v[{C.SD}:{C.SD+3}]'}")
            a(f"v_bitop3_b32 v{AL+16+L}, v{b}, v{b+2}, s{S_T3} bitop3:0x7e")
        a(f"v_bitop3_b32 v{T_}, v{AL+16}, v{AL+17}, 1 bitop3:0xa8\nv_cmp_eq_u32 vcc, 1, v{T_}")
    if cfg.get("pipeB"):
        bissue(AL)
        backoff(a, cfg["pipeB"])
        a(f"{Lb}:")
        bissue(AL + 8); bcheck(AL, 2)
        a(f"s_cbranch_vccz {Lbx}")
        cnt(a, 10)
        bissue(AL); bcheck(AL + 8, 2)
        a(f"s_cbranch_vccz {Lbx}")
        cnt(a, 10)
        spin_fail(a, Lbx)
        a(f"s_branch {Lb}")
    else:
        a(f"{Lb}:")
        bissue(AL)
        cnt(a, 10)
        spin_fail(a, Lbx)
        bcheck(AL, 0)
        a(f"s_cbranch_vccnz {Lb}")
    a(f"{Lbx}:")
    sp(a, 5)
    S_ = C.SD
    a(f"v_permlane32_swap_b32 v{S_}, v{S_+1}\nv_permlane32_swap_b32 v{S_+2}, v{S_+3}\nv_add_f32 v{S_}, v{S_}, v{S_+1}\nv_add_f32 v{S_+2}, v{S_+2}, v{S_+3}")
    a(f"v_permlane16_swap_b32 v{S_}, v{S_+2}\nv_add_f32 v{S_}, v{S_}, v{S_+2}")
    a(f"v_mov_b32_dpp v{S_+1}, v{S_} row_shl:2 row_mask:0xf bank_mask:0xf\nv_cvt_pk_bf16_f32 v{S_}, v{S_}, v{S_+1}")
    a(f"buffer_store_dword v{S_}, v{C.MST}, s[4:7], s{S_T4} offen sc1")
    a(f"{Lb3}:")
    sp(a, 6)
    a(f"s_waitcnt vmcnt(1)\ns_barrier\nv_mov_b32 v{C.T+3}, s{C.S_S}\nbuffer_store_dword v{C.T+3}, v{C.FLA}, s[4:7], 0 offen sc1")
    a(f"s_add_u32 s{S_T4}, s{C.S_S}, 1\ns_min_u32 s{S_T4}, s{S_T4}, {NSEG-1}")
    a(f"s_mov_b32 s{C.S_NXT}, s{S_T4}")
    if not cfg.get("solo"):
        Lo = a.label("ord"); Lo2 = a.label("ord2")
        a(f"s_cmp_eq_u32 s{C.S_S}, 48\ns_cbranch_scc1 {Lo}\n{Lo2}:")
        def ostub():
            a(f"{Lo}:")
            poll_dbg_ge(a, DBG_T2, 32, C.T)
            a(f"s_branch {Lo2}")
        stubs.append(ostub)
    side_offsets()
    a(f"v_readlane_b32 s{C.S_SEEN}, v{C.TFV}, 0\nv_readlane_b32 s{S_T0}, v{C.TFV}, 1\nv_readlane_b32 s{S_T1}, v{C.TFV}, 2\ns_min_u32 s{C.S_SEEN}, s{C.S_SEEN}, s{S_T0}\ns_min_u32 s{C.S_SEEN}, s{C.S_SEEN}, s{S_T1}")
    for r in range(12): a(f"v_mov_b32 v{C.VXR+r}, v{VN+r}")
    backoff(a, cfg.get("dC", 0))
    a(f"s_branch {Lstep}")
    for f in stubs: f()
    a(f"{Lfinal}:")
    for x in kmvm(): a(x)
    a(f"s_waitcnt vmcnt(0)\ns_barrier\nv_mov_b32 v{T1}, {NSEG}\nbuffer_store_dword v{T1}, v{C.FLA}, s[4:7], 0 offen sc1")
    a(f"{Ldone}:")
    if cfg.get("sprof"):
        a(f"s_lshl_b32 s98, s{R}, 2\ns_add_u32 s98, s98, s{S_WAVE}\ns_lshl_b32 s98, s98, 6\ns_add_u32 s98, s98, {PROF + MB}\nv_mov_b32 v{C.T+1}, 0\ns_mov_b64 exec, 1")
        for i in range(16): a(f"v_mov_b32 v{C.T}, s{16+i}\nbuffer_store_dword v{C.T}, v{C.T+1}, s[4:7], s98 offen offset:{4*i}")
        a("s_mov_b64 exec, -1")
    stamp(a, 3, C.T)
```

```python
from gen_head import *
OOB = 0x70000000
import struct
def f32bits(x): return struct.unpack('<I', struct.pack('<f', x))[0]
class Eng:
    ACC = (16, 40)
    FR = 64
    NF = 8
    V_RA = 96
    V_DA = 100
    V_EA = 112
    V_FL = 120
    V_T = 122
    V_W = 128
    V_EP = 128
    S_SEG = 54; S_SOFF = 55; S_EOFF = 56; S_LDW = 57; S_LDR = 58; S_ENX = 59; S_EST = 60; S_NSEG = 61
    S_WA = 62; S_WB = 63; S_SLOT = 64; S_SC = 66

def wreg(i):
    return f"a[{4*i}:{4*i+3}]" if i < 64 else f"v[{Eng.V_W + 4*(i-64)}:{Eng.V_W + 4*(i-64) + 3}]"
def wreg2(i, h):
    b = 4*i + 2*h
    return f"a[{b}:{b+1}]" if i < 64 else f"v[{Eng.V_W + b - 256}:{Eng.V_W + b - 255}]"

def stage_weights(a, NU, parts, reads, ring, lds0=0, early=None):
    ub = sum(p[4] for p in parts)*4096
    per = sum(p[4] for p in parts)
    def dma(u):
        for (sr, v, sb, soff, n, lo) in parts:
            for k in range(n):
                a(f"s_mul_i32 s{S_T2}, s{S_WAVE}, {n*1024}\ns_add_u32 m0, s{S_T2}, {lds0 + (u % ring)*ub + lo + k*1024}\ns_add_u32 s{S_T1}, s{sb}, {soff(u, k)}")
                a(f"buffer_load_dwordx4 v{v}, s[{sr}:{sr+3}], s{S_T1} offen nt lds")
    n0 = min(NU, ring - 1)
    q = []
    for u in range(n0):
        dma(u); q += [u]*per
    if early: q += [None]*early(a)
    issued = n0
    for u in range(NU):
        last = max(i for i, x in enumerate(q) if x == u)
        assert len(q) - 1 - last <= 63
        a(f"s_waitcnt vmcnt({len(q) - 1 - last}) lgkmcnt(0)\ns_barrier")
        if issued < NU:
            dma(issued); q += [issued]*per; issued += 1
        for t in reads(u, lds0 + (u % ring)*ub): a(t)
    a("s_waitcnt lgkmcnt(0)")

def lane_rows(a, vreg, lanes_per_row_log2, row_stride):
    t = Eng.V_T; k = lanes_per_row_log2
    a(f"v_lshrrev_b32 v{t}, {k}, v{V_LANE}\nv_mul_u32_u24 v{t}, {row_stride}, v{t}\nv_and_b32 v{vreg}, {(1 << k) - 1}, v{V_LANE}\nv_lshl_add_u32 v{vreg}, v{vreg}, 4, v{t}")

def tr_addr(a, vreg, row_bytes_log2, c4_shift, s_add):
    t = Eng.V_T
    a(f"v_lshrrev_b32 v{t}, 4, v{V_LANE}\nv_lshlrev_b32 v{t}, 3, v{t}\nv_bfe_u32 v{t+1}, v{V_LANE}, 2, 2\nv_add_u32 v{t}, v{t}, v{t+1}\nv_and_b32 v{t+1}, 3, v{V_LANE}")
    a(f"v_lshlrev_b32 v{t}, {row_bytes_log2}, v{t}\nv_lshl_add_u32 v{t}, v{t+1}, {c4_shift}, v{t}\nv_add_u32 v{vreg}, s{s_add}, v{t}")

def stream_rowmajor(a, perm=False):
    E_ = Eng; t = E_.V_T
    for k in range(10):
        a(f"s_mul_i32 s{S_T0}, s{S_WAVE}, 640\ns_add_u32 s{S_T0}, s{S_T0}, {k*64}\nv_add_u32 v{t}, s{S_T0}, v{V_LANE}")
        a(f"v_mul_u32_u24 v{t+1}, 52429, v{t}\nv_lshrrev_b32 v{t+1}, 22, v{t+1}")
        a(f"v_mul_u32_u24 v{t+2}, 80, v{t+1}\nv_sub_u32 v{t+2}, v{t}, v{t+2}")
        if perm: a(f"v_lshrrev_b32 v{t+3}, 4, v{t+1}\nv_lshlrev_b32 v{t+3}, 3, v{t+3}\nv_and_or_b32 v{t+3}, v{t+1}, 7, v{t+3}")
        else: a(f"v_and_b32 v{t+3}, 15, v{t+1}")
        a(f"v_xor_b32 v{t+2}, v{t+2}, v{t+3}")
        a(f"v_mul_u32_u24 v{t+1}, 1280, v{t+1}\nv_lshl_add_u32 v{E_.V_DA+k}, v{t+2}, 4, v{t+1}")
    a(f"v_and_b32 v{t}, 15, v{V_LANE}\nv_lshrrev_b32 v{t+1}, 4, v{V_LANE}\nv_xor_b32 v{t+1}, v{t+1}, v{t}")
    if perm: a(f"v_lshrrev_b32 v{t+2}, 3, v{t}\nv_lshlrev_b32 v{t+2}, 4, v{t+2}\nv_and_or_b32 v{t}, v{t}, 7, v{t+2}")
    a(f"v_mul_u32_u24 v{t}, 1280, v{t}")
    for b in range(4):
        a(f"v_xor_b32 v{t+2}, {4*b}, v{t+1}\nv_lshl_add_u32 v{E_.V_RA+b}, v{t+2}, 4, v{t}")

def stream_linear(a, ND):
    E_ = Eng; t = E_.V_T
    a(f"s_mul_i32 s{S_T0}, s{S_WAVE}, {ND*1024}\nv_lshlrev_b32 v{E_.V_DA}, 4, v{V_LANE}\nv_add_u32 v{E_.V_DA}, s{S_T0}, v{E_.V_DA}")
    a(f"v_lshrrev_b32 v{t}, 4, v{V_LANE}\nv_and_b32 v{t+1}, 15, v{V_LANE}\nv_lshlrev_b32 v{t}, 9, v{t}\nv_lshl_add_u32 v{E_.V_RA}, v{t+1}, 4, v{t}")

def flag_addr(a, vreg, off_sreg):
    a(f"v_mov_b32 v{vreg}, s{off_sreg}\nv_mov_b32 v{Eng.V_T}, {OOB}\nv_cmp_eq_u32 vcc, 0, v0\nv_cndmask_b32 v{vreg}, v{Eng.V_T}, v{vreg}, vcc")

def engine(a, name, NK, NT, orient, KP, srd_x, slot_stride, mode, epi, nst, xflags="", pre_dma=None, flag=None, mid=None, nmid=0, staging=None, epi_block=None, fast0=False, gate=None):
    E_ = Eng
    SLOT = NK*2048
    ND = NK // 2
    PD = E_.NF
    NS = 2*NK
    assert NS % E_.NF == 0
    lin = mode == 'lin'
    nra = 1 if lin else 4
    toff = {'row': 20480, 'perm': 10240, 'lin': 256}[mode]
    def dma(k):
        r = [f"s_add_u32 m0, s{E_.S_LDW}, {k*1024}"]
        if lin:
            r.append(f"s_add_u32 s{S_T1}, s{E_.S_SOFF}, {k*1024}")
            r.append(f"buffer_load_dwordx4 v{E_.V_DA}, s[{srd_x}:{srd_x+3}], s{S_T1} offen {xflags} lds")
        else:
            r.append("s_nop 0")
            r.append(f"buffer_load_dwordx4 v{E_.V_DA+k}, s[{srd_x}:{srd_x+3}], s{E_.S_SOFF} offen {xflags} lds")
        return r
    def adv_w(p):
        return [f"s_add_u32 s{E_.S_SOFF}, s{E_.S_SOFF}, {slot_stride(p)}",
                f"s_add_u32 s{E_.S_LDW}, s{E_.S_LDW}, {SLOT}",
                f"s_cmp_ge_u32 s{E_.S_LDW}, {3*SLOT}",
                f"s_cselect_b32 s{S_T1}, {3*SLOT}, 0",
                f"s_sub_u32 s{E_.S_LDW}, s{E_.S_LDW}, s{S_T1}"]
    def rd(g):
        u, t = g // 2, g % 2
        f = E_.FR + 4*(g % E_.NF)
        if lin: return f"ds_read_b128 v[{f}:{f+3}], v{E_.V_RA} offset:{u*2048 + t*toff}"
        return f"ds_read_b128 v[{f}:{f+3}], v{E_.V_RA + u % 4} offset:{(u // 4)*256 + t*toff}"
    def mf(acc, kp, g):
        u, t = g // 2, g % 2
        f = E_.FR + 4*(g % E_.NF)
        r = []
        for tau in range(NT):
            W = wreg((kp*NK + u)*NT + tau); X = f"v[{f}:{f+3}]"
            A, B = (W, X) if orient[tau] == 'A' else (X, W)
            d = acc + 4*(2*tau + t)
            C = "0" if (u == 0 and kp == 0) else f"v[{d}:{d+3}]"
            r.append(f"v_mfma_f32_16x16x32_bf16 v[{d}:{d+3}], {A}, {B}, {C}")
        return r
    def prime(a):
        a(f"s_mul_i32 s{E_.S_LDW}, s{S_WAVE}, {ND*1024}\ns_mov_b32 s{E_.S_LDR}, 0\ns_mov_b32 s{E_.S_EOFF}, {OOB}\ns_mov_b32 s{E_.S_SEG}, -2\ns_mov_b32 s{E_.S_SLOT}, {SLOT}")
        for p in range(2):
            if gate: gate[2](a, 2)
            for k in range(ND):
                for t in dma(k): a(t)
            for t in adv_w(p % KP): a(t)
            a(f"s_add_u32 s{E_.S_SEG}, s{E_.S_SEG}, 1")
        return 2*ND
    if staging is not None:
        staging(prime)
        a("s_waitcnt vmcnt(0)\ns_barrier")
    else:
        a("s_barrier")
        prime(a)
        if gate: gate[2](a, 2)
        a(f"s_waitcnt vmcnt({ND})\ns_barrier")
    for g in range(PD): a(rd(g))
    Lloop = a.label(name + "_loop"); Lend = a.label(name + "_end")
    NP = 2*KP
    def nops(p): return ND + (nst if p % KP == 0 else 0) + (nmid if p % KP == KP - 1 else 0) + (1 if (flag is not None and p % KP == 0) else 0)
    BAR = NS - PD + 1
    late = []
    a(f"{Lloop}:")
    for p in range(NP):
        kp = p % KP; acc = E_.ACC[p // KP]
        pend_flag = []
        if flag is not None and kp == 0:
            if fast0: pend_flag = [f"s_sub_i32 s{S_T3}, s{E_.S_SEG}, 2", f"s_min_u32 s{S_T4}, s{E_.S_SEG}, 2", f"s_max_i32 s{S_T3}, s{S_T3}, s{S_T4}"]
            elif KP == 1: pend_flag = [f"s_sub_i32 s{S_T3}, s{E_.S_SEG}, 2", f"s_max_i32 s{S_T3}, s{S_T3}, 0"]
            else: pend_flag = [f"s_lshr_b32 s{S_T3}, s{E_.S_SEG}, 1", f"s_sub_i32 s{S_T3}, s{S_T3}, 1", f"s_max_i32 s{S_T3}, s{S_T3}, 0"]
            pend_flag += [f"v_mov_b32 v{E_.V_T}, s{S_T3}", f"buffer_store_dword v{E_.V_T}, v{flag}, s[4:7], 0 offen sc1"]
        dsp = max(1, (BAR - 3) // ND)
        dq = []
        for k in range(ND):
            if CFG.get("nodma") and name == "t1": continue
            for x in dma(k):
                if x != "s_nop 0": dq.append((k*dsp, x))
        for x in adv_w((p + 2) % KP): dq.append(((ND-1)*dsp, x))
        ep = []
        if kp == 0:
            ep += epi(E_.ACC[1 - p // KP]) + [f"s_mov_b32 s{E_.S_EOFF}, s{E_.S_ENX}", f"s_add_u32 s{E_.S_ENX}, s{E_.S_ENX}, s{E_.S_EST}"]
        if CFG.get("noepi") and name == "t1": ep = ep[-2:]
        if mid and kp == KP - 1: ep += mid()
        if pend_flag: ep = pend_flag + ep
        e0 = 3; nsl = BAR - 3 - e0
        mq = [(0 if (pend_flag and i < len(pend_flag)) else e0 + i*nsl // len(ep), t) for i, t in enumerate(ep)]
        mq += [(BAR - 3, x) for x in (f"s_add_u32 s{E_.S_SEG}, s{E_.S_SEG}, 1", f"s_add_u32 s{E_.S_LDR}, s{E_.S_LDR}, {SLOT}", f"s_cmp_ge_u32 s{E_.S_LDR}, {3*SLOT}",
                                      f"s_cselect_b32 s{S_T2}, {-2*SLOT}, s{E_.S_SLOT}", f"s_cselect_b32 s{E_.S_LDR}, 0, s{E_.S_LDR}")]
        mq += [(BAR - 1, f"v_add_u32 v{E_.V_RA+b}, s{S_T2}, v{E_.V_RA+b}") for b in range(nra)]
        if fast0:
            Lf = a.label("f0"); Lf2 = a.label("f0b")
            a(f"s_sub_u32 s{S_T3}, s{E_.S_SEG}, 1\ns_cmp_lt_u32 s{S_T3}, 2\ns_cbranch_scc1 {Lf}\n{Lf2}:")
            def stub(Lf=Lf, Lf2=Lf2, accp=E_.ACC[1 - p // KP]):
                a(f"{Lf}:")
                for x in epi(accp): a(x)
                a(f"s_waitcnt vmcnt(0)\ns_barrier\ns_branch {Lf2}")
            late.append(stub)
        if epi_block and kp == 0: epi_block(a, E_.ACC[1 - p // KP], False)
        if gate: gate[0](a)
        scc_busy = False
        for g in range(NS):
            if g <= BAR: a(f"s_waitcnt lgkmcnt({min(g + PD, NS) - g - 1})")
            m = mf(acc, kp, g)
            for i in range(NT):
                a(m[i])
                cap = 2
                if i == NT - 1:
                    if g + PD < NS: a(rd(g + PD)); cap = 0
                    elif g > BAR: a(rd(g - (NS - PD))); cap = 1
                    else: cap = 1
                if g == BAR and i == NT - 1: cap = 99
                used_dma = False
                while cap > 0:
                    pick = None
                    if scc_busy == 'd' or (not scc_busy and dq and dq[0][0] <= g and not used_dma): pick = 'd' if dq else None
                    if pick is None and (scc_busy == 'm' or (not scc_busy and mq and mq[0][0] <= g)): pick = 'm' if mq else None
                    if pick is None: break
                    q = dq if pick == 'd' else mq
                    x = q.pop(0)[1]
                    a(x); cap -= 1
                    if x.startswith("s_cmp"): scc_busy = pick
                    elif scc_busy == pick and not (q and q[0][1].startswith("s_cselect")): scc_busy = False
                    if pick == 'd' and "m0" in x.split(",")[0] and not lin: used_dma = True
                    if pick == 'd' and x.startswith("buffer_load"): used_dma = True
            if g == BAR:
                assert not dq and not mq, (name, dq, mq)
                if p == NP - 1: a(f"s_cmp_ge_u32 s{E_.S_SEG}, s{E_.S_NSEG}\ns_cbranch_scc1 {Lend}")
                a(f"s_waitcnt vmcnt({nops(p)}) lgkmcnt(0)")
                if gate: gate[1](a, late)
                a("s_barrier")
                a(rd(0)); a(rd(1))
    a(f"s_branch {Lloop}")
    for f in late: f()
    a(f"{Lend}:")
    a("s_waitcnt lgkmcnt(0)")
    for g in range(BAR + 1, NS):
        for t in mf(E_.ACC[1], KP - 1, g): a(t)
    for t in epi(E_.ACC[1]): a(t)
    if epi_block: epi_block(a, E_.ACC[1], True)
    a("s_waitcnt vmcnt(0)\ns_barrier")
    if flag is not None:
        a(f"s_lshr_b32 s{S_T1}, s{E_.S_NSEG}, {KP-1}\nv_mov_b32 v{E_.V_T}, s{S_T1}\nbuffer_store_dword v{E_.V_T}, v{flag}, s[4:7], 0 offen sc1")

def cvt4(dst, src):
    return [f"v_cvt_pk_bf16_f32 v{dst}, v{src}, v{src+1}", f"v_cvt_pk_bf16_f32 v{dst+1}, v{src+2}, v{src+3}"]

def role_T1(a, cfg):
    E_ = Eng; t = E_.V_T
    c = E**-0.5 * math.log2(math.e)
    a(f"s_cmp_lt_u32 s{S_WAVE}, 2\ns_mov_b32 s{S_T0}, {f32bits(c)}\ns_cselect_b32 s{E_.S_SC}, 1.0, s{S_T0}\ns_mov_b32 s{E_.S_SC+1}, s{E_.S_SC}")
    a(f"s_mov_b32 s{S_T0}, {QX}\ns_cselect_b32 s{S_T3}, {KX}, s{S_T0}")
    srd(a, 8, P_WK, D*H*E*2); srd(a, 12, P_WQ, D*H*E*2); srd(a, 68, P_WV, D*H*E*2); srd(a, 72, P_X, S*D*2)
    a(f"s_mul_i32 s{S_T0}, s{S_WAVE}, {8*12288}\ns_lshl_b32 s{E_.S_WA}, s{S_ROLE}, 7\ns_add_u32 s{E_.S_WA}, s{E_.S_WA}, s{S_T0}")
    lane_rows(a, E_.V_EP, 3, 12288)
    a(f"s_lshr_b32 s{S_T0}, s{S_WAVE}, 1\ns_lshl_b32 s{S_T0}, s{S_T0}, 12\ns_and_b32 s{S_T1}, s{S_WAVE}, 1\ns_lshl_b32 s{S_T1}, s{S_T1}, 6\ns_add_u32 s{S_T0}, s{S_T0}, s{S_T1}\ns_add_u32 s{S_T0}, s{S_T0}, 81920")
    tr_addr(a, E_.V_EP+1, 7, 4, S_T0)
    a(f"s_lshl_b32 s{S_T0}, s{S_WAVE}, 5\ns_add_u32 s{S_T0}, s{S_T0}, {81920 + 8192}")
    tr_addr(a, E_.V_EP+2, 7, 3, S_T0)
    a(f"s_lshl_b32 s{E_.S_ENX}, s{S_ROLE}, 12\ns_mov_b32 s{E_.S_EST}, {32*12288}\ns_mov_b32 s{E_.S_SOFF}, 0\ns_mov_b32 s{E_.S_NSEG}, {NSEG}")
    a(f"s_and_b32 s{S_T0}, s{S_WAVE}, 1\ns_lshl_b32 s{S_T0}, s{S_T0}, 11\ns_add_u32 s{S_T3}, s{S_T3}, s{S_T0}")
    a(f"v_lshrrev_b32 v{t}, 4, v{V_LANE}\nv_and_b32 v{t+1}, 15, v{V_LANE}\nv_lshlrev_b32 v{t}, 9, v{t}\nv_lshl_add_u32 v{t}, v{t+1}, 4, v{t}\nv_add_u32 v{E_.V_EA}, s{S_T3}, v{t}")
    a(f"s_lshl_b32 s{S_T0}, s{S_WAVE}, 10\ns_add_u32 s{S_T0}, s{S_T0}, {VX}\nv_lshlrev_b32 v{t}, 4, v{V_LANE}\nv_add_u32 v{E_.V_EA+1}, s{S_T0}, v{t}")
    a(f"s_lshl_b32 s{S_T0}, s{S_ROLE}, 7\ns_add_u32 s{S_T0}, s{S_T0}, {F_T1}")
    flag_addr(a, E_.V_FL, S_T0)
    stream_rowmajor(a)
    def reads(u, base):
        r = []; o = base - 81920
        for tau in range(2):
            for m in range(2): r.append(f"ds_read_b64_tr_b16 {wreg2(u*3 + tau, m)}, v{E_.V_EP+1} offset:{o + tau*8 + m*512}")
        for m in range(2): r.append(f"ds_read_b64_tr_b16 {wreg2(u*3 + 2, m)}, v{E_.V_EP+2} offset:{o + m*512}")
        return r
    def staging(prime):
        so = lambda u, k: 32*u*12288
        stage_weights(a, 20, [(8, E_.V_EP, E_.S_WA, so, 1, 0), (12, E_.V_EP, E_.S_WA, so, 1, 4096), (68, E_.V_EP, E_.S_WA, so, 1, 8192)],
                      reads, 5, lds0=81920, early=prime)
        stamp(a, 1)
        poll_dbg_ge(a, DBG_INIT, 64, t)
        stamp(a, 2)
    def epi(acc):
        r = []; P = E_.V_EP
        for tt in range(2):
            for tau in range(2):
                d = acc + 4*(2*tau + tt)
                r += cvt4(P + 4*tt + 2*tau, d)
            r.append(f"buffer_store_dwordx4 v[{P+4*tt}:{P+4*tt+3}], v{E_.V_EA}, s[4:7], s{E_.S_EOFF} offen offset:{256*tt} {CFG.get('t1f', 'sc1')}")
        r += cvt4(P + 8, acc + 16) + cvt4(P + 10, acc + 20)
        r.append(f"buffer_store_dwordx4 v[{P+8}:{P+11}], v{E_.V_EA+1}, s[4:7], s{E_.S_EOFF} offen {CFG.get('t1f', 'sc1')}")
        return r
    engine(a, "t1", 20, 3, "AAB", 1, 72, lambda p: 40960, 'row', epi, 3, flag=E_.V_FL, staging=staging, fast0=True)
    stamp(a, 3)
```

```python
import sys, math
sys.path.insert(0, "gen")
from asmlib import Asm
from layout import *

SPIN_MAX = 20000
P_X, P_MEM0, P_WQ, P_WK, P_WV, P_WO = 16, 18, 20, 22, 24, 26
P_WQKV, P_WOB, P_GATE, P_OUT, P_DBG, P_WS = 32, 34, 36, 38, 40, 42
SRD_WS = 4
SRD_A = 8
SRD_B = 12
S_WAVE = 44
S_ROLE = 45
S_XCC = 46
S_RANK = 47
S_T0, S_T1, S_T2, S_T3, S_T4 = 48, 49, 50, 51, 52
S_SPIN = 53
V_LANE = 1

def srd(a, base, ptr, nbytes):
    a(f"s_mov_b32 s{base}, s{ptr}\ns_mov_b32 s{base+1}, s{ptr+1}\ns_mov_b32 s{base+2}, {nbytes}\ns_mov_b32 s{base+3}, 0x20000")

def poll_word(a, load, val, vt, slp):
    L = a.label("pd"); Lx = a.label("pdx")
    a(f"s_cmp_lg_u32 s{S_WAVE}, 0\ns_cbranch_scc1 {Lx}\ns_mov_b32 s{S_SPIN}, 0\n{L}:")
    a(load)
    a(f"s_add_u32 s{S_SPIN}, s{S_SPIN}, 1\ns_cmp_gt_u32 s{S_SPIN}, {SPIN_MAX}\ns_cbranch_scc1 {Lx}")
    a(f"s_waitcnt vmcnt(0)\nv_readfirstlane_b32 s{S_T0}, v{vt+1}")
    a(f"s_cmp_ge_u32 s{S_T0}, {val}\ns_cbranch_scc1 {Lx}\ns_sleep {slp}\ns_branch {L}")
    a(f"{Lx}:\ns_waitcnt vmcnt(0)\ns_barrier")
def poll_dbg_ge(a, dword, val, vt=2, slp=16):
    a(f"v_mov_b32 v{vt}, {dword*4}")
    poll_word(a, f"global_load_dword v{vt+1}, v{vt}, s[{P_DBG}:{P_DBG+1}] sc1", val, vt, slp)
def poll_t1_started(a, vt):
    poll_dbg_ge(a, DBG_INIT, 64, vt)
    a(f"s_and_b32 s{S_T0}, s{S_ROLE}, 63\ns_lshl_b32 s{S_T0}, s{S_T0}, 7\ns_add_u32 s{S_T0}, s{S_T0}, {F_T1}\nv_mov_b32 v{vt}, s{S_T0}")
    poll_word(a, f"buffer_load_dword v{vt+1}, v{vt}, s[4:7], 0 offen sc1", 1, vt, 16)

def dbg_add(a, dword, vt=2):
    L = a.label("da")
    a("s_waitcnt vmcnt(0)\ns_barrier")
    a(f"s_cmp_lg_u32 s{S_WAVE}, 0\ns_cbranch_scc1 {L}")
    a(f"v_mov_b32 v{vt}, {dword*4}\nv_mov_b32 v{vt+1}, 1\ns_mov_b64 exec, 1")
    a(f"global_atomic_add v{vt}, v{vt+1}, s[{P_DBG}:{P_DBG+1}] sc1")
    a("s_mov_b64 exec, -1")
    a(f"{L}:")

def fill(a, start_sreg, n16, val, vt=2):
    a(f"v_lshlrev_b32 v{vt}, 4, v0")
    for i in range(4): a(f"v_mov_b32 v{vt+2+i}, {val}")
    a(f"s_mov_b32 s{S_T1}, s{start_sreg}")
    for i in range(n16):
        a(f"buffer_store_dwordx4 v[{vt+2}:{vt+5}], v{vt}, s[4:7], s{S_T1} offen sc1")
        if i + 1 < n16: a(f"s_add_u32 s{S_T1}, s{S_T1}, 4096")

PROF = 240*MB
CFG = {}
def stamp(a, idx, vt=122):
    if not CFG.get("prof"): return
    L = a.label("st")
    a(f"s_cmp_lg_u32 s{S_WAVE}, 0\ns_cbranch_scc1 {L}")
    a(f"s_memrealtime s[98:99]\ns_memtime s[96:97]\ns_lshl_b32 s100, s{S_XCC}, 5\ns_add_u32 s100, s100, s{S_RANK}\ns_lshl_b32 s100, s100, 8\ns_add_u32 s100, s100, {PROF + idx*4}")
    a(f"s_waitcnt lgkmcnt(0)\nv_mov_b32 v{vt}, s98\nv_mov_b32 v{vt+1}, s100\ns_mov_b64 exec, 1")
    a(f"buffer_store_dword v{vt}, v{vt+1}, s[4:7], 0 offen\nv_mov_b32 v{vt+2}, s96\nbuffer_store_dword v{vt+2}, v{vt+1}, s[4:7], 0 offen offset:128\ns_mov_b64 exec, -1")
    a(f"{L}:")

def probe(a, region_sreg, dst_sreg):
    t = 8
    L = a.label("prb")
    a(f"s_cmp_lg_u32 s{S_WAVE}, 0\ns_cbranch_scc1 {L}")
    a(f"s_waitcnt vmcnt(0)\ns_mov_b64 exec, 1\nv_mov_b32 v{t}, 0\ns_mov_b32 s70, -1\ns_mov_b32 s71, -1")
    for rep in range(4):
        for p in range(2):
            a(f"s_add_u32 s{S_T1}, s{region_sreg}, {2*MB - 16384 + p*8192 + rep*1024}")
            a("s_memtime s[72:73]\ns_waitcnt lgkmcnt(0)")
            a(f"buffer_store_dword v{t}, v{t}, s[4:7], s{S_T1} offen sc1\ns_waitcnt vmcnt(0)")
            a(f"buffer_load_dword v{t+1}, v{t}, s[4:7], s{S_T1} offen sc1\ns_waitcnt vmcnt(0)")
            a(f"s_memtime s[74:75]\ns_waitcnt lgkmcnt(0)\ns_sub_u32 s74, s74, s72\ns_min_u32 s{70+p}, s{70+p}, s74")
    a(f"s_cmp_lt_u32 s71, s70\ns_cselect_b32 s{S_T1}, 1, 0\nv_mov_b32 v{t+1}, s{S_T1}")
    a(f"buffer_store_dword v{t+1}, v{t}, s[4:7], s{dst_sreg} offen sc1")
    if CFG.get("prof"):
        a(f"v_mov_b32 v{t+1}, s70\nbuffer_store_dword v{t+1}, v{t}, s[4:7], s{dst_sreg} offen offset:4 sc1\nv_mov_b32 v{t+2}, s71\nbuffer_store_dword v{t+2}, v{t}, s[4:7], s{dst_sreg} offen offset:8 sc1")
    a(f"s_mov_b64 exec, -1\n{L}:")

def prologue(a, cfg):
    a("s_cmp_ge_u32 s2, 256\ns_cbranch_scc1 L_exit")
    a("s_load_dwordx16 s[16:31], s[0:1], 0\ns_load_dwordx8 s[32:39], s[0:1], 64\ns_load_dwordx4 s[40:43], s[0:1], 96")
    a(f"s_getreg_b32 s{S_XCC}, hwreg(HW_REG_XCC_ID, 0, 4)\ns_and_b32 s{S_XCC}, s{S_XCC}, 7")
    a(f"v_and_b32 v{V_LANE}, 63, v0\nv_lshrrev_b32 v2, 6, v0\ns_nop 0\nv_readfirstlane_b32 s{S_WAVE}, v2")
    a("s_waitcnt lgkmcnt(0)")
    srd(a, SRD_WS, P_WS, WS_BYTES)
    a(f"s_cmp_lg_u32 s{S_WAVE}, 0\ns_cbranch_scc1 L_rank_w")
    a(f"s_and_b32 s{S_T0}, s{S_XCC}, 1\ns_lshl_b32 s{S_T0}, s{S_T0}, 7\ns_lshr_b32 s{S_T1}, s{S_XCC}, 1\ns_lshl_b32 s{S_T1}, s{S_T1}, 2\ns_add_u32 s{S_T0}, s{S_T0}, s{S_T1}")
    a(f"v_mov_b32 v2, s{S_T0}\nv_mov_b32 v3, 1\nv_mov_b32 v5, 0\ns_mov_b64 exec, 1")
    a(f"global_atomic_add v4, v2, v3, s[{P_DBG}:{P_DBG+1}] sc0 sc1")
    a("s_waitcnt vmcnt(0)\nds_write_b32 v5, v4\ns_mov_b64 exec, -1\ns_waitcnt lgkmcnt(0)")
    a("L_rank_w:\ns_barrier\nv_mov_b32 v5, 0\nds_read_b32 v4, v5\ns_waitcnt lgkmcnt(0)")
    a(f"v_readfirstlane_b32 s{S_RANK}, v4\ns_barrier")
    a(f"s_cmp_lt_u32 s{S_RANK}, 32\ns_cbranch_scc1 L_slot_ok")
    a(f"s_mov_b32 s{S_SPIN}, 0")
    a(f"v_and_b32 v2, 1, v{V_LANE}\nv_lshlrev_b32 v2, 7, v2\nv_lshrrev_b32 v3, 1, v{V_LANE}\nv_and_b32 v3, 3, v3\nv_lshl_add_u32 v2, v3, 2, v2")
    a("L_ovf:")
    a(f"global_load_dword v3, v2, s[{P_DBG}:{P_DBG+1}] sc1\ns_waitcnt vmcnt(0)")
    a(f"s_mov_b32 s{S_T0}, 0")
    for x in range(8):
        a(f"v_readlane_b32 s{60+x}, v3, {x}\ns_add_u32 s{S_T0}, s{S_T0}, s{60+x}")
    a(f"s_add_u32 s{S_SPIN}, s{S_SPIN}, 1\ns_cmp_gt_u32 s{S_SPIN}, {SPIN_MAX}\ns_cbranch_scc1 L_exit")
    a(f"s_cmp_lt_u32 s{S_T0}, 256\ns_cbranch_scc1 L_ovf")
    a(f"s_sub_u32 s{S_T0}, s{S_RANK}, 32")
    for x in range(7):
        a(f"s_max_u32 s{S_T1}, s{60+x}, 32\ns_sub_u32 s{S_T1}, s{S_T1}, 32\ns_cmp_gt_u32 s{S_XCC}, {x}\ns_cselect_b32 s{S_T1}, s{S_T1}, 0\ns_add_u32 s{S_T0}, s{S_T0}, s{S_T1}")
    for x in range(8):
        Ln = a.label("ov")
        a(f"s_min_u32 s{S_T1}, s{60+x}, 32\ns_sub_u32 s{S_T2}, 32, s{S_T1}")
        a(f"s_cmp_ge_u32 s{S_T0}, s{S_T2}\ns_cbranch_scc1 {Ln}")
        a(f"s_mov_b32 s{S_XCC}, {x}\ns_add_u32 s{S_RANK}, s{S_T1}, s{S_T0}\ns_branch L_slot_ok")
        a(f"{Ln}:\ns_sub_u32 s{S_T0}, s{S_T0}, s{S_T2}")
    a("s_branch L_exit")
    a("L_slot_ok:")
    stamp(a, 0)
    a(f"s_cmp_ge_u32 s{S_XCC}, 4\ns_cbranch_scc1 L_hi")
    a(f"s_cmp_ge_u32 s{S_RANK}, 24\ns_cbranch_scc1 L_lo_bulk")
    a(f"s_mul_i32 s{S_ROLE}, s{S_XCC}, 24\ns_add_u32 s{S_ROLE}, s{S_ROLE}, s{S_RANK}\ns_branch L_chain")
    lo_base, hi_base = (96, 128) if cfg.get("swap", 1) else (128, 96)
    a(f"L_lo_bulk:\ns_lshl_b32 s{S_ROLE}, s{S_XCC}, 3\ns_add_u32 s{S_ROLE}, s{S_ROLE}, s{S_RANK}\ns_add_u32 s{S_ROLE}, s{S_ROLE}, {lo_base - 24}\ns_branch L_bulk")
    a(f"L_hi:\ns_sub_u32 s{S_T1}, s{S_XCC}, 4\ns_lshl_b32 s{S_T0}, s{S_RANK}, 2\ns_add_u32 s{S_ROLE}, s{S_T1}, s{S_T0}")
    a(f"s_cmp_lt_u32 s{S_RANK}, 24\ns_cbranch_scc1 L_bulk\ns_lshl_b32 s{S_ROLE}, s{S_T1}, 3\ns_add_u32 s{S_ROLE}, s{S_ROLE}, s{S_RANK}\ns_add_u32 s{S_ROLE}, s{S_ROLE}, {hi_base - 24}")
    a("L_bulk:")
    a(f"s_cmp_lt_u32 s{S_ROLE}, 96\ns_cbranch_scc1 L_g1\ns_sub_u32 s54, s{S_ROLE}, 96")
    Lb = a.label("fb")
    a(f"s_mul_i32 s{S_T0}, s54, 20480\ns_add_u32 s{S_T0}, s{S_T0}, {R_MEM}")
    fill(a, S_T0, 5, -1)
    a(f"s_cmp_ge_u32 s54, 40\ns_cbranch_scc1 {Lb}\ns_lshl_b32 s{S_T0}, s54, 14\ns_add_u32 s{S_T0}, s{S_T0}, {R_B0}")
    fill(a, S_T0, 4, -1)
    a(f"{Lb}:")
    Lz = a.label("z"); Lz2 = a.label("z2")
    a(f"s_lshl_b32 s{S_T0}, s54, 13\ns_cmp_lt_u32 s54, 16\ns_cbranch_scc1 {Lz2}\ns_add_u32 s{S_T0}, s{S_T0}, {ABUF - 16*8192}\n{Lz2}:")
    fill(a, S_T0, 2, 0)
    a(f"{Lz}:")
    Lm = a.label("m0"); Lm2 = a.label("m02")
    a(f"s_cmp_eq_u32 s54, 0\ns_cselect_b32 s{S_T2}, 0, 2\ns_cmp_eq_u32 s54, 51\ns_cselect_b32 s{S_T2}, 1, s{S_T2}\ns_cmp_eq_u32 s{S_T2}, 2\ns_cbranch_scc1 {Lm}")
    a("s_waitcnt vmcnt(0)\ns_barrier")
    srd(a, SRD_A, P_MEM0, M*D*2)
    a(f"s_lshl_b32 s{S_T3}, s{S_T2}, 20\ns_add_u32 s{S_T3}, s{S_T3}, {R_MEM}")
    a("v_and_b32 v2, 3, v0\nv_lshrrev_b32 v3, 2, v0")
    a("v_lshrrev_b32 v4, 4, v3\nv_lshl_add_u32 v2, v4, 2, v2")
    a("v_bfe_u32 v4, v3, 1, 1\nv_lshl_add_u32 v2, v4, 5, v2")
    a("v_bfe_u32 v4, v3, 2, 2\nv_and_b32 v5, 1, v3\nv_lshl_add_u32 v4, v4, 1, v5")
    a("v_mul_u32_u24 v4, 640, v4\nv_add_u32 v2, v2, v4\nv_lshlrev_b32 v2, 1, v2\nv_lshlrev_b32 v3, 2, v0")
    a(f"s_lshl_b32 s{S_T0}, s{S_T2}, 10")
    for k in range(8):
        a(f"buffer_load_ushort v{8+2*k}, v2, s[8:11], s{S_T0} offen offset:{128*k}\nbuffer_load_ushort v{9+2*k}, v2, s[8:11], s{S_T0} offen offset:{128*k+32}")
    a("s_waitcnt vmcnt(0)")
    for k in range(8):
        if k == 2: a(f"s_cmp_eq_u32 s{S_T2}, 1\ns_cbranch_scc1 {Lm}")
        a(f"v_lshl_or_b32 v{8+2*k}, v{9+2*k}, 16, v{8+2*k}\ns_add_u32 s{S_T1}, s{S_T3}, {1024*k}\nbuffer_store_dword v{8+2*k}, v3, s[4:7], s{S_T1} offen sc1")
        a(f"s_add_u32 s{S_T1}, s{S_T1}, 8192\nbuffer_store_dword v{8+2*k}, v3, s[4:7], s{S_T1} offen sc1")
    a(f"{Lm}:")
    Lnp = a.label("npb")
    a(f"s_cmp_lg_u32 s{S_XCC}, 3\ns_cbranch_scc1 {Lnp}\ns_sub_u32 s{S_T0}, s{S_RANK}, 30\ns_cmp_ge_u32 s{S_T0}, 2\ns_cbranch_scc1 {Lnp}")
    a(f"s_lshl_b32 s{S_T3}, s{S_T0}, 21\ns_add_u32 s{S_T3}, s{S_T3}, {R_MEM}\ns_lshl_b32 s{S_T4}, s{S_T0}, 7\ns_add_u32 s{S_T4}, s{S_T4}, {F_PAR}")
    probe(a, S_T3, S_T4)
    a(f"{Lnp}:")
    a(f"s_cmp_ge_u32 s{S_ROLE}, 128\ns_cbranch_scc1 L_gc")
    a("s_branch L_gb")
```

```python
from gen_chain import *

def gate(a):
    t = 8
    srd(a, 8, P_X, S*D*2); srd(a, 12, P_GATE, D*2)
    a(f"v_and_b32 v2, 15, v{V_LANE}\nv_mul_u32_u24 v2, 80, v2\nv_lshrrev_b32 v3, 4, v{V_LANE}\nv_mul_u32_u24 v4, 1280, v3\nv_add_u32 v4, v4, v2")
    for k in range(5): a(f"buffer_load_dwordx4 v[{8+4*k}:{11+4*k}], v2, s[12:15], 0 offen offset:{16*k}")
    a(f"s_lshl_b32 s{S_T3}, s{S_T3}, 8\ns_lshl_b32 s{S_T0}, s{S_WAVE}, 6\ns_add_u32 s{S_T3}, s{S_T3}, s{S_T0}")
    a(f"v_lshlrev_b32 v5, 3, v3\nv_mov_b32 v6, {OOB}\nv_and_b32 v7, 15, v{V_LANE}\nv_cmp_eq_u32 vcc, 0, v7\nv_cndmask_b32 v5, v6, v5, vcc")
    a("s_waitcnt vmcnt(0)")
    for k in range(20): a(f"v_lshlrev_b32 v{32+2*k}, 16, v{8+k}\nv_and_b32 v{33+2*k}, 0xffff0000, v{8+k}")
    L = a.label("gate")
    a(f"s_mov_b32 s{S_T4}, 0\n{L}:")
    a(f"s_add_u32 s{S_T0}, s{S_T3}, s{S_T4}\ns_mul_i32 s{S_T1}, s{S_T0}, 1280\ns_lshl_b32 s{S_T0}, s{S_T0}, 3\ns_add_u32 s{S_T0}, s{S_T0}, {GT}")
    for k in range(5): a(f"buffer_load_dwordx4 v[{8+4*k}:{11+4*k}], v4, s[8:11], s{S_T1} offen offset:{16*k}")
    a("v_mov_b32 v28, 0\nv_mov_b32 v29, 0")
    for k in range(20):
        if k % 4 == 0: a(f"s_waitcnt vmcnt({4 - k//4})")
        a(f"v_lshlrev_b32 v30, 16, v{8+k}\nv_and_b32 v31, 0xffff0000, v{8+k}\nv_pk_mul_f32 v[30:31], v[30:31], v[{32+2*k}:{33+2*k}]")
        a(f"v_cvt_pk_bf16_f32 v72, v30, v31\nv_lshlrev_b32 v30, 16, v72\nv_and_b32 v31, 0xffff0000, v72\nv_pk_add_f32 v[28:29], v[28:29], v[30:31]")
    a("v_add_f32 v28, v28, v29")
    for sh in (8, 4, 2, 1): a(f"v_add_f32_dpp v28, v28, v28 row_ror:{sh} row_mask:0xf bank_mask:0xf")
    a(f"v_cvt_pk_bf16_f32 v28, v28, v28\nv_lshlrev_b32 v28, 16, v28\nv_mul_f32 v28, {f32bits(-math.log2(math.e))}, v28\nv_exp_f32 v28, v28")
    a("v_add_f32 v28, 1.0, v28\nv_rcp_f32 v28, v28\nv_cvt_pk_bf16_f32 v28, v28, v28\nv_lshlrev_b32 v28, 16, v28")
    a("v_sub_f32 v29, 1.0, v28\nv_cvt_pk_bf16_f32 v29, v29, v29\nv_lshlrev_b32 v29, 16, v29")
    a(f"buffer_store_dwordx2 v[28:29], v5, s[4:7], s{S_T0} offen sc1")
    a(f"s_add_u32 s{S_T4}, s{S_T4}, 4\ns_cmp_lt_u32 s{S_T4}, 64\ns_cbranch_scc1 {L}")

def poll3(a, vaddr, vt, need_sreg, seen_sreg, nl=3, slp=None):
    Lp = a.label("p3"); Lx = a.label("p3x")
    a(f"s_cmp_gt_u32 s{seen_sreg}, s{need_sreg}\ns_cbranch_scc1 {Lx}\ns_mov_b32 s{S_SPIN}, 0\n{Lp}:")
    a(f"buffer_load_dword v{vt}, v{vaddr}, s[4:7], 0 offen sc1")
    spin_fail(a, Lx)
    a(f"s_waitcnt vmcnt(0)\nv_readlane_b32 s{seen_sreg}, v{vt}, 0")
    for k in range(1, nl): a(f"v_readlane_b32 s{S_T0}, v{vt}, {k}\ns_min_u32 s{seen_sreg}, s{seen_sreg}, s{S_T0}")
    a(f"s_cmp_gt_u32 s{seen_sreg}, s{need_sreg}\ns_cbranch_scc1 {Lx}\ns_sleep {slp or CFG.get('psl', 4)}\ns_branch {Lp}\n{Lx}:")

def role_T4(a, cfg):
    Q0, K0, V0 = 0, 48, 96
    KM0, VM0 = 192, 216
    O0 = 16; S0 = 112; P0 = 132; G0 = 148; T = 152; LA = 2; A16 = 3; KML = 4; FT = 5; FC = 6; GA = 7; FO = 8
    s_n, s_x8, s_seg, s_h, s_base, s_g, s_nseg, s_nh, s_nbase, s_has, s_seenT, s_seenC = 54, 55, 56, 57, 58, 59, 60, 61, 62, 63, 64, 65
    MK = 66
    a(f"s_mul_i32 s{S_T0}, s{S_T3}, 21846\ns_lshr_b32 s{S_T0}, s{S_T0}, 16\ns_lshl_b32 s{s_x8}, s{S_T0}, 3\ns_mul_i32 s{S_T0}, s{S_T0}, 3\ns_sub_u32 s{S_T0}, s{S_T3}, s{S_T0}")
    a(f"s_lshl_b32 s{S_T0}, s{S_T0}, 2\ns_add_u32 s{s_n}, s{S_T0}, s{S_WAVE}\ns_mov_b32 s82, {NMAIN*8}")
    poll_dbg_ge(a, DBG_INIT, 64, T)
    poll_dbg_ge(a, DBG_GATE, 8, T)
    a("L_t4_entry:")
    a(f"v_lshrrev_b32 v{T}, 4, v{V_LANE}\nv_and_b32 v{T+1}, 15, v{V_LANE}\nv_lshlrev_b32 v{T+2}, 9, v{T}\nv_lshl_add_u32 v{LA}, v{T+1}, 4, v{T+2}\nv_lshlrev_b32 v{A16}, 4, v{V_LANE}")
    a(f"v_bfe_u32 v{T+2}, v{V_LANE}, 2, 2\nv_and_b32 v{T+3}, 1, v{V_LANE}\nv_lshl_add_u32 v{T+2}, v{T+2}, 1, v{T+3}\nv_lshlrev_b32 v{T+3}, 7, v{T}\nv_lshl_add_u32 v{KML}, v{T+2}, 4, v{T+3}")
    a(f"v_lshlrev_b32 v{GA}, 3, v{T+1}")
    for r in range(4): a(f"v_lshl_add_u32 v{T+2}, v{T}, 2, {r}\nv_cmp_gt_u32 s[{MK+2*r}:{MK+2*r+1}], v{T+2}, v{T+1}")
    a(f"v_mov_b32 v{FO}, {OOB}\nv_cmp_lg_u32 vcc, 0, v{V_LANE}\nv_cndmask_b32 v{FO}, 0, v{FO}, vcc".replace("v_cmp_lg_u32", "v_cmp_ne_u32"))
    for r in (P0+2, P0+3, P0+9, P0+10, P0+13, P0+14): a(f"v_mov_b32 v{r}, 0")
    a(f"s_mov_b32 s80, {f32bits(E**-0.5*math.log2(math.e))}\ns_mov_b32 s81, s80")
    def decode(n, seg, h, base):
        a(f"s_lshr_b32 s{seg}, s{n}, 3\ns_and_b32 s{h}, s{n}, 7\ns_add_u32 s{h}, s{h}, s{s_x8}\ns_lshl_b32 s{base}, s{seg}, 5\ns_add_u32 s{base}, s{base}, s{h}\ns_mul_i32 s{base}, s{base}, 12288")
    def flagaddr(v, h, fbase):
        a(f"s_mul_i32 s{S_T0}, s{h}, 384\ns_add_u32 s{S_T0}, s{S_T0}, {fbase}\nv_min_u32 v{v}, 2, v{V_LANE}\nv_lshl_add_u32 v{v}, v{v}, 7, s{S_T0}")
    def loadKQ(reg0, gbase, base):
        for k in range(3): a(f"s_add_u32 s{74+k}, s{base}, {gbase + k*4096}")
        for tt in range(2):
            for u in range(6):
                r = reg0 + (tt*6 + u)*4
                a(f"buffer_load_dwordx4 a[{r}:{r+3}], v{LA}, s[4:7], s{74 + u//2} offen offset:{(u % 2)*2048 + tt*256} sc1")
    def loadV(base):
        for k in range(3): a(f"s_add_u32 s{74+k}, s{base}, {VX + k*4096}")
        for T_ in range(12): a(f"buffer_load_dwordx4 a[{V0+4*T_}:{V0+4*T_+3}], v{A16}, s[4:7], s{74 + T_//4} offen offset:{(T_ % 4)*1024} sc1")
    decode(s_n, s_seg, s_h, s_base)
    flagaddr(FT, s_h, F_T1)
    a(f"s_mov_b32 s{s_seenT}, 0")
    poll3(a, FT, T, s_seg, s_seenT)
    loadKQ(K0, KX, s_base); loadKQ(Q0, QX, s_base); loadV(s_base)
    Lt = a.label("t4"); Lend = a.label("t4e")
    mf = lambda d, A, B, C: f"v_mfma_f32_16x16x32_bf16 v[{d}:{d+3}], {A}, {B}, {C}"
    ar = lambda r: f"a[{r}:{r+3}]"
    a(f"{Lt}:")
    a("s_waitcnt vmcnt(12)")
    for u in range(6):
        for d, kt, qt in ((S0, 0, 0), (S0+4, 0, 1), (S0+8, 1, 1)):
            a(mf(d, ar(K0 + (kt*6 + u)*4), ar(Q0 + (qt*6 + u)*4), "0" if u == 0 else f"v[{d}:{d+3}]"))
    Lnn = a.label("t4n")
    a(f"s_add_u32 s{s_n}, s{s_n}, 12\ns_cmp_lt_u32 s{s_n}, s82\ns_cselect_b32 s{s_has}, 1, 0\ns_cbranch_scc0 {Lnn}")
    decode(s_n, s_nseg, s_nh, s_nbase)
    flagaddr(FT, s_nh, F_T1)
    a(f"s_mov_b32 s{s_seenT}, 0")
    poll3(a, FT, T, s_nseg, s_seenT)
    loadKQ(K0, KX, s_nbase)
    a(f"{Lnn}:")
    flagaddr(FC, s_h, F_CH)
    a(f"s_mov_b32 s{s_seenC}, 0\ns_cmp_eq_u32 s82, 0\ns_cselect_b32 s83, 1, 0\ns_sub_u32 s83, s{s_seg}, s83")
    a(f"s_lshl_b32 s{s_g}, s{s_seg}, 8\ns_add_u32 s{s_g}, s{s_g}, {GT}")
    for qt in range(2): a(f"buffer_load_dword v{G0+qt}, v{GA}, s[4:7], s{s_g} offen offset:{qt*128} sc1")
    a(f"v_mov_b32 v{T+1}, 0xff800000")
    for r in range(4):
        a(f"v_cndmask_b32 v{S0+r}, v{S0+r}, v{T+1}, s[{MK+2*r}:{MK+2*r+1}]\nv_cndmask_b32 v{S0+8+r}, v{S0+8+r}, v{T+1}, s[{MK+2*r}:{MK+2*r+1}]")
    poll3(a, FC, T, 83, s_seenC)
    Lk = a.label("t4k"); Lkx = a.label("t4kx"); Lns = a.label("t4ns")
    a(f"s_cmp_lg_u32 s82, 0\ns_cbranch_scc1 {Lns}\ns_sleep {cfg.get('dT4', 14)}\n{Lns}:")
    stamp(a, 10, T + 8)
    a(f"s_lshr_b32 s{S_T0}, s{s_base}, 2\ns_add_u32 s{S_T1}, s{S_T0}, {KM}\ns_add_u32 s{S_T2}, s{S_T0}, {VM}\ns_mov_b32 s{S_SPIN}, 0\n{Lk}:")
    for u in range(6): a(f"buffer_load_dwordx4 v[{KM0+4*u}:{KM0+4*u+3}], v{KML}, s[4:7], s{S_T1} offen offset:{u*512} sc1")
    for j in range(3): a(f"buffer_load_dwordx4 v[{VM0+4*j}:{VM0+4*j+3}], v{A16}, s[4:7], s{S_T2} offen offset:{j*1024} sc1")
    spin_fail(a, Lkx)
    for u in range(9):
        b = KM0 + 4*u
        a(f"s_waitcnt vmcnt({8-u})")
        if u < 6:
            for qt in range(2):
                d = S0 + 12 + 4*qt
                a(mf(d, f"v[{b}:{b+3}]", ar(Q0 + (qt*6 + u)*4), "0" if u == 0 else f"v[{d}:{d+3}]"))
        if u == 0: a(f"v_max3_u32 v{T}, v{b}, v{b+1}, v{b+2}\nv_max_u32 v{T}, v{T}, v{b+3}")
        else: a(f"v_max3_u32 v{T}, v{T}, v{b}, v{b+1}\nv_max3_u32 v{T}, v{T}, v{b+2}, v{b+3}")
    a(f"v_cmp_eq_u32 vcc, -1, v{T}\ns_cbranch_vccnz {Lk}\n{Lkx}:\ns_waitcnt vmcnt(0)")
    stamp(a, 11, T + 8)
    Lq = a.label("t4q")
    a(f"s_cmp_eq_u32 s{s_has}, 0\ns_cbranch_scc1 {Lq}")
    loadKQ(Q0, QX, s_nbase)
    a(f"{Lq}:")
    def xred(op, x, y):
        a(f"v_mov_b32 v{y}, v{x}\nv_permlane32_swap_b32 v{x}, v{y}\n{op} v{x}, v{x}, v{y}\nv_mov_b32 v{y}, v{x}\nv_permlane16_swap_b32 v{x}, v{y}\n{op} v{x}, v{x}, v{y}")
    vals = ([S0, S0+1, S0+2, S0+3, S0+12, S0+13], [S0+4, S0+5, S0+6, S0+7, S0+8, S0+9, S0+10, S0+11, S0+16, S0+17])
    for qt in range(2):
        v = vals[qt]; m = T + 2*qt
        a(f"v_max3_f32 v{m}, v{v[0]}, v{v[1]}, v{v[2]}")
        for k in range(3, len(v) - 1, 2): a(f"v_max3_f32 v{m}, v{m}, v{v[k]}, v{v[k+1]}")
        a(f"v_max_f32 v{m}, v{m}, v{v[-1]}")
        xred("v_max_f32", m, T + 4)
        a(f"v_mul_f32 v{m}, s80, v{m}")
        for k in range(0, len(v), 2): a(f"v_pk_fma_f32 v[{v[k]}:{v[k]+1}], v[{v[k]}:{v[k]+1}], s[80:81], v[{m}:{m+1}] op_sel_hi:[1,1,0] neg_lo:[0,0,1] neg_hi:[0,0,1]")
        for r in v: a(f"v_exp_f32 v{r}, v{r}")
        pb = P0 + 4*qt
        for k in range(0, len(v) - 2, 2): a(f"v_cvt_pk_bf16_f32 v{pb + k//2}, v{v[k]}, v{v[k+1]}")
        a(f"v_cvt_pk_bf16_f32 v{P0+8+4*qt}, v{v[-2]}, v{v[-1]}\nv_cvt_pk_bf16_f32 v{P0+11+4*qt}, v{v[-2]}, v{v[-1]}")
        for k in range(2, len(v), 2): a(f"v_pk_add_f32 v[{v[0]}:{v[0]+1}], v[{v[0]}:{v[0]+1}], v[{v[k]}:{v[k]+1}]")
        a(f"v_add_f32 v{m}, v{v[0]}, v{v[0]+1}")
        xred("v_add_f32", m, T + 4)
        a(f"v_rcp_f32 v{m}, v{m}\nv_mul_f32 v{m}, v{m}, v{G0+qt}")
    def pv(T_):
        r = []
        for qt in range(2):
            d = O0 + (T_*2 + qt)*4
            r.append(mf(d, ar(V0 + 4*T_), f"v[{P0+4*qt}:{P0+4*qt+3}]", "0"))
        for qt in range(2):
            d = O0 + (T_*2 + qt)*4; vm = VM0 + (T_//4)*4 + 2*((T_ % 4) >> 1); pm = P0 + 8 + 4*qt + 2*(T_ & 1)
            r.append(f"v_mfma_f32_16x16x16_bf16 v[{d}:{d+3}], v[{vm}:{vm+1}], v[{pm}:{pm+1}], v[{d}:{d+3}]")
        return r
    def oepi(P):
        r = []
        for qt in range(2):
            e = T + 8 + 4*((2*P + qt) % 4); m = T + 2*qt
            for h2 in range(2):
                d = O0 + ((2*P + h2)*2 + qt)*4
                for i in range(2): r.append(f"v_pk_mul_f32 v[{d+2*i}:{d+2*i+1}], v[{d+2*i}:{d+2*i+1}], v[{m}:{m+1}] op_sel_hi:[1,0]")
                r += cvt4(e + 2*h2, d)
            r.append(f"buffer_store_dwordx4 v[{e}:{e+3}], v{LA}, s[4:7], s{77 + P//2} offen offset:{(P % 2)*2048 + qt*256} sc1")
        return r
    for k in range(3): a(f"s_add_u32 s{77+k}, s{s_base}, {OX + k*4096}")
    for P in range(7):
        mm = (pv(2*P) + pv(2*P + 1)) if P < 6 else []
        ee = oepi(P - 1) if P >= 1 else []
        if not mm:
            for x in ee: a(x)
            continue
        for i, x in enumerate(mm):
            a(x)
            if i >= 2:
                for y in ee[(i-2)*len(ee)//6:(i-1)*len(ee)//6]: a(y)
    stamp(a, 12, T + 24)
    Lf = a.label("t4f"); Lf2 = a.label("t4f2")
    a(f"s_cmp_eq_u32 s{s_has}, 0\ns_cbranch_scc1 {Lf}")
    loadV(s_nbase)
    a(f"s_waitcnt vmcnt(12)\ns_branch {Lf2}\n{Lf}:\ns_waitcnt vmcnt(0)\n{Lf2}:")
    a(f"s_lshl_b32 s{S_T0}, s{s_seg}, 3\ns_lshr_b32 s{S_T1}, s{s_h}, 2\ns_add_u32 s{S_T0}, s{S_T0}, s{S_T1}\ns_lshl_b32 s{S_T0}, s{S_T0}, 5\ns_and_b32 s{S_T1}, s{s_h}, 3\ns_add_u32 s{S_T0}, s{S_T0}, s{S_T1}\ns_lshl_b32 s{S_T0}, s{S_T0}, 2\ns_add_u32 s{S_T0}, s{S_T0}, {F_O}\nv_mov_b32 v{T+4}, 1")
    a(f"buffer_store_dword v{T+4}, v{FO}, s[4:7], s{S_T0} offen sc1")
    a(f"s_cmp_eq_u32 s{s_has}, 0\ns_cbranch_scc1 {Lend}")
    a(f"s_mov_b32 s{s_seg}, s{s_nseg}\ns_mov_b32 s{s_h}, s{s_nh}\ns_mov_b32 s{s_base}, s{s_nbase}\ns_branch {Lt}")
    a(f"{Lend}:")
    stamp(a, 9)

def t4_tail_entry(a):
    a(f"s_lshl_b32 s{S_T0}, s{S_T3}, 2\ns_add_u32 s{S_T0}, s{S_T0}, s{S_WAVE}\ns_and_b32 s55, s{S_T0}, 24\ns_lshr_b32 s{S_T1}, s{S_T0}, 5\ns_add_u32 s{S_T1}, s{S_T1}, {NMAIN}")
    a(f"s_lshl_b32 s{S_T1}, s{S_T1}, 3\ns_and_b32 s{S_T0}, s{S_T0}, 7\ns_add_u32 s54, s{S_T1}, s{S_T0}\ns_mov_b32 s82, 0\ns_branch L_t4_entry")

def poll4(a, vz, so, slp, first_loaded=False):
    Lp = a.label("p4"); Lc = a.label("p4c"); Lx = a.label("p4x")
    a(f"s_cmp_lg_u32 s{S_WAVE}, 0\ns_cbranch_scc1 {Lx}\ns_mov_b32 s{S_SPIN}, 0")
    if first_loaded: a(f"s_branch {Lc}")
    a(f"{Lp}:\nbuffer_load_dwordx4 v[2:5], v{vz}, s[4:7], s{so} offen sc1")
    a(f"s_add_u32 s{S_SPIN}, s{S_SPIN}, 1\ns_cmp_gt_u32 s{S_SPIN}, {SPIN_MAX*4}\ns_cbranch_scc1 {Lx}\ns_waitcnt vmcnt(0)\n{Lc}:")
    a(f"v_and_b32 v2, v2, v3\nv_bitop3_b32 v2, v2, v4, v5 bitop3:0x80\nv_readfirstlane_b32 s{S_T0}, v2\ns_cmp_eq_u32 s{S_T0}, 1\ns_cbranch_scc1 {Lx}\ns_sleep {slp}\ns_branch {Lp}\n{Lx}:")

def role_T5T(a, cfg):
    E_ = Eng; t = E_.V_T
    s_id, s_i, s_src, s_dst, s_fo = 76, 77, 78, 79, 80
    a(f"s_mov_b32 s{s_id}, s{S_T3}\ns_and_b32 s{S_T3}, s{s_id}, 7\ns_lshr_b32 s{S_T4}, s{s_id}, 3")
    srd(a, 8, P_WO, D*H*E*2)
    lane_rows(a, E_.V_EA, 4, 1280)
    a(f"s_mul_i32 s{E_.S_WA}, s{S_T3}, {768*1280}\ns_mul_i32 s{S_T0}, s{S_WAVE}, {4*1280}\ns_add_u32 s{E_.S_WA}, s{E_.S_WA}, s{S_T0}\ns_lshl_b32 s{S_T0}, s{S_T4}, 8\ns_add_u32 s{E_.S_WA}, s{E_.S_WA}, s{S_T0}")
    a(f"s_mul_i32 s{s_src}, s{S_T3}, 49152\ns_add_u32 s{s_src}, s{s_src}, {OX + NMAIN*32*12288}\ns_lshl_b32 s{s_dst}, s{s_id}, 14\ns_add_u32 s{s_dst}, s{s_dst}, {PART2}")
    a(f"s_lshl_b32 s{s_fo}, s{S_T3}, 7\ns_add_u32 s{s_fo}, s{s_fo}, {F_O + NMAIN*1024}")
    a(f"s_lshl_b32 s{S_T0}, s{S_WAVE}, 6")
    tr_addr(a, E_.V_EA+1, 8, 4, S_T0)
    def reads(u, base):
        return [f"ds_read_b64_tr_b16 {wreg2(u*2 + tau, m)}, v{E_.V_EA+1} offset:{base + tau*8 + m*1024}" for tau in range(2) for m in range(2)]
    a("s_barrier")
    stage_weights(a, 24, [(8, E_.V_EA, E_.S_WA, lambda u, k: ((u//6)*192 + 32*(u % 6) + 16*k)*1280, 2, 0)], reads, cfg.get("wring", 4), lds0=0)
    stream_linear(a, 12)
    a(f"s_lshl_b32 s{S_T0}, s{s_id}, 7\ns_add_u32 s{S_T0}, s{S_T0}, {F_T5T}")
    flag_addr(a, E_.V_FL, S_T0)
    a(f"s_lshl_b32 s{S_T0}, s{S_WAVE}, 12\nv_lshlrev_b32 v{E_.V_EA}, 4, v{V_LANE}\nv_add_u32 v{E_.V_EA}, s{S_T0}, v{E_.V_EA}\nv_mov_b32 v{E_.V_EA+2}, 0")
    a(f"s_mul_i32 s{E_.S_LDW}, s{S_WAVE}, 12288\ns_mov_b32 s{s_i}, 0\ns_barrier")
    srd(a, 12, P_OUT, S*D*2)
    s_out, s_gat = 81, 82
    a(f"v_and_b32 v{t}, 3, v{V_LANE}\nv_mul_u32_u24 v{t}, 12288, v{t}\nv_add_u32 v{E_.V_EA+2}, {12288 - 16}, v{t}")
    a(f"s_and_b32 s{S_T3}, s{s_id}, 7\ns_lshr_b32 s{S_T4}, s{s_id}, 3\ns_lshr_b32 s{S_T0}, s{S_T3}, 1\ns_and_b32 s{S_T1}, s{S_T3}, 1")
    a(f"s_mul_i32 s{s_gat}, s{S_T4}, {9*16384}\ns_add_u32 s{s_gat}, s{s_gat}, {PART2}\ns_lshl_b32 s{S_T2}, s{S_T3}, 14\ns_add_u32 s{s_dst}, s{s_gat}, s{S_T2}")
    a(f"s_lshl_b32 s{S_T2}, s{S_T0}, 12\ns_add_u32 s{s_gat}, s{s_gat}, s{S_T2}\ns_lshl_b32 s{S_T2}, s{S_T1}, 10\ns_add_u32 s{s_gat}, s{s_gat}, s{S_T2}")
    a(f"s_mul_i32 s{s_out}, s{S_T1}, 20480\ns_lshl_b32 s{S_T0}, s{S_T0}, 6\ns_add_u32 s{s_out}, s{s_out}, s{S_T0}\ns_lshl_b32 s{S_T0}, s{S_T4}, 8\ns_add_u32 s{s_out}, s{s_out}, s{S_T0}\ns_add_u32 s{s_out}, s{s_out}, {NMAIN*40960}")
    a(f"v_and_b32 v{t}, 15, v{V_LANE}\nv_mul_u32_u24 v{t}, 1280, v{t}\nv_lshrrev_b32 v{t+1}, 4, v{V_LANE}\nv_lshl_add_u32 v{E_.V_EA+3}, v{t+1}, 4, v{t}\nv_lshlrev_b32 v{E_.V_EA+4}, 4, v{V_LANE}")
    L = a.label("t5t"); Lp = a.label("t5tp"); Lx = a.label("t5tx"); Lre = a.label("t5tr"); Lok = a.label("t5to")
    a(f"{L}:\ns_mov_b32 s83, 0\n{Lre}:")
    a(f"s_cmp_lg_u32 s{S_WAVE}, 0\ns_cbranch_scc1 {Lx}\ns_mov_b32 s{S_SPIN}, 0\n{Lp}:")
    a(f"buffer_load_dword v2, v{E_.V_EA+2}, s[4:7], s{s_src} offen sc1")
    a(f"s_add_u32 s{S_SPIN}, s{S_SPIN}, 1\ns_cmp_gt_u32 s{S_SPIN}, {SPIN_MAX*4}\ns_cbranch_scc1 {Lx}")
    a(f"s_waitcnt vmcnt(0)\nv_cmp_eq_u32 vcc, -1, v2\ns_cbranch_vccz {Lx}\ns_sleep 2\ns_branch {Lp}\n{Lx}:\ns_barrier")
    stamp(a, 10)
    for k in range(12):
        a(f"s_add_u32 m0, s{E_.S_LDW}, {k*1024}\ns_add_u32 s{S_T1}, s{s_src}, {k*1024}\nbuffer_load_dwordx4 v{E_.V_DA}, s[4:7], s{S_T1} offen sc1 lds")
    a("s_waitcnt vmcnt(0)\ns_barrier")
    stamp(a, 11)
    acc = E_.ACC[0]
    rd = lambda g: f"ds_read_b128 v[{E_.FR + 4*(g % 8)}:{E_.FR + 4*(g % 8) + 3}], v{E_.V_RA} offset:{(g//2)*2048 + (g % 2)*256}"
    for g in range(8): a(rd(g))
    for g in range(48):
        a(f"s_waitcnt lgkmcnt({min(g + 8, 48) - g - 1})")
        f = E_.FR + 4*(g % 8)
        for tau in range(2):
            d = acc + 4*(2*tau + g % 2)
            a(f"v_mfma_f32_16x16x32_bf16 v[{d}:{d+3}], {wreg((g//2)*2 + tau)}, v[{f}:{f+3}], {'0' if g < 2 else f'v[{d}:{d+3}]'}")
        if g + 8 < 48: a(rd(g + 8))
    a(f"s_add_u32 s83, s83, 1\ns_cmp_gt_u32 s83, 50\ns_cbranch_scc1 {Lok}")
    a(f"v_cmp_u_f32 vcc, v{acc}, v{acc+4}\ns_cbranch_vccnz {Lre}\n{Lok}:")
    stamp(a, 12)
    for i in range(4): a(f"buffer_store_dwordx4 v[{acc+4*i}:{acc+4*i+3}], v{E_.V_EA}, s[4:7], s{s_dst} offen offset:{1024*i} sc1")
    Lg = a.label("t5tg"); Lgx = a.label("t5tgx"); Lw = a.label("t5tw")
    P = E_.V_EP
    a(f"s_cmp_lg_u32 s{S_WAVE}, 0\ns_cbranch_scc1 {Lw}\ns_sleep {cfg.get('dT5', 6)}\ns_mov_b32 s{S_SPIN}, 0\n{Lg}:\ns_mov_b32 s{S_T0}, s{s_gat}")
    for src in range(9):
        for tau in range(2): a(f"buffer_load_dwordx4 v[{P+8*src+4*tau}:{P+8*src+4*tau+3}], v{E_.V_EA+4}, s[4:7], s{S_T0} offen offset:{2048*tau} sc1")
        if src < 8: a(f"s_add_u32 s{S_T0}, s{S_T0}, 16384")
    spin_fail(a, Lgx)
    for src in range(1, 9):
        a(f"s_waitcnt vmcnt({2*(8 - src)})")
        for k in range(4): a(f"v_pk_add_f32 v[{P+2*k}:{P+2*k+1}], v[{P+2*k}:{P+2*k+1}], v[{P+8*src+2*k}:{P+8*src+2*k+1}]")
    a(f"v_cmp_u_f32 vcc, v{P}, v{P+1}")
    for k in range(1, 4): a(f"v_cmp_u_f32 s[{84+2*k}:{85+2*k}], v{P+2*k}, v{P+2*k+1}")
    a(f"s_or_b64 vcc, vcc, s[86:87]\ns_or_b64 vcc, vcc, s[88:89]\ns_or_b64 vcc, vcc, s[90:91]\ns_cbranch_vccnz {Lg}\n{Lgx}:\ns_waitcnt vmcnt(0)")
    for x in cvt4(P + 8, P) + cvt4(P + 10, P + 4): a(x)
    a(f"buffer_store_dwordx4 v[{P+8}:{P+11}], v{E_.V_EA+3}, s[12:15], s{s_out} offen\n{Lw}:")
    a(f"s_add_u32 s{s_i}, s{s_i}, 1\ns_add_u32 s{s_src}, s{s_src}, {32*12288}\ns_add_u32 s{s_dst}, s{s_dst}, {45*16384}\ns_add_u32 s{s_gat}, s{s_gat}, {45*16384}\ns_add_u32 s{s_out}, s{s_out}, 40960")
    a(f"s_cmp_lt_u32 s{s_i}, {NSEG - NMAIN}\ns_cbranch_scc1 {L}")
    stamp(a, 9)

def role_T5(a, cfg):
    E_ = Eng; t = E_.V_T
    s_kq, s_nn, s_fo = 76, 77, 78
    a(f"s_mov_b32 s{s_kq}, s{S_T3}\ns_mov_b32 s{s_nn}, s{S_T4}")
    srd(a, 8, P_WO, D*H*E*2)
    poll_t1_started(a, t)
    lane_rows(a, E_.V_EA, 4, 1280)
    a(f"s_mul_i32 s{E_.S_WA}, s{s_kq}, {1536*1280}\ns_mul_i32 s{S_T0}, s{S_WAVE}, {4*1280}\ns_add_u32 s{E_.S_WA}, s{E_.S_WA}, s{S_T0}\ns_lshl_b32 s{S_T0}, s{s_nn}, 8\ns_add_u32 s{E_.S_WA}, s{E_.S_WA}, s{S_T0}")
    a(f"s_lshl_b32 s{S_T0}, s{S_WAVE}, 6")
    tr_addr(a, E_.V_EA+1, 8, 4, S_T0)
    def reads(u, base):
        return [f"ds_read_b64_tr_b16 {wreg2(u*2 + tau, m)}, v{E_.V_EA+1} offset:{base + tau*8 + m*1024}" for tau in range(2) for m in range(2)]
    stage_weights(a, 48, [(8, E_.V_EA, E_.S_WA, lambda u, k: ((u//6)*192 + 32*(u % 6) + 16*k)*1280, 2, 0)], reads, cfg.get("wring", 4), lds0=0)
    stamp(a, 1)
    stream_linear(a, 12)
    a(f"s_mul_i32 s{E_.S_SOFF}, s{s_kq}, {8*12288}\ns_add_u32 s{E_.S_SOFF}, s{E_.S_SOFF}, {OX}\ns_mov_b32 s{E_.S_NSEG}, {2*NMAIN}")
    a(f"s_lshl_b32 s{S_T0}, s{s_nn}, 2\ns_add_u32 s{S_T0}, s{S_T0}, s{s_kq}\ns_lshl_b32 s{E_.S_ENX}, s{S_T0}, 14\ns_add_u32 s{E_.S_ENX}, s{E_.S_ENX}, {PART}\ns_mov_b32 s{E_.S_EST}, {5*4*16384}")
    a(f"s_lshl_b32 s{S_T0}, s{S_T0}, 7\ns_add_u32 s{S_T0}, s{S_T0}, {F_T5}")
    flag_addr(a, E_.V_FL, S_T0)
    a(f"s_lshl_b32 s{S_T0}, s{S_WAVE}, 12\nv_lshlrev_b32 v{E_.V_EA}, 4, v{V_LANE}\nv_add_u32 v{E_.V_EA}, s{S_T0}, v{E_.V_EA}")
    a(f"s_lshl_b32 s{s_fo}, s{s_kq}, 8\ns_add_u32 s{s_fo}, s{s_fo}, {F_O}\nv_mov_b32 v{E_.V_EA+2}, 0")
    s_ga = 79
    def gaddr(a, ahead):
        a(f"s_add_u32 s{s_ga}, s{E_.S_SEG}, {ahead}\ns_min_u32 s{s_ga}, s{s_ga}, {2*NMAIN - 1}\ns_lshr_b32 s{S_T0}, s{s_ga}, 1\ns_lshl_b32 s{S_T0}, s{S_T0}, 10\ns_and_b32 s{s_ga}, s{s_ga}, 1\ns_lshl_b32 s{s_ga}, s{s_ga}, 7\ns_add_u32 s{s_ga}, s{s_ga}, s{S_T0}\ns_add_u32 s{s_ga}, s{s_ga}, s{s_fo}")
    def g_load(a):
        gaddr(a, 3)
        a(f"buffer_load_dwordx4 v[2:5], v{E_.V_EA+2}, s[4:7], s{s_ga} offen sc1")
    def g_check(a, late):
        poll4(a, E_.V_EA+2, s_ga, cfg.get("psl", 4), first_loaded=True)
    def g_block(a, ahead):
        gaddr(a, ahead)
        poll4(a, E_.V_EA+2, s_ga, cfg.get("psl", 4))
        a("s_barrier")
    def epi(acc):
        return [f"buffer_store_dwordx4 v[{acc+4*i}:{acc+4*i+3}], v{E_.V_EA}, s[4:7], s{E_.S_EOFF} offen offset:{1024*i} sc1" for i in range(4)]
    engine(a, "t5", 24, 2, "AA", 2, 4, lambda kp: 49152 if kp == 0 else 32*12288 - 49152, 'lin', epi, 4, xflags="sc1", gate=(g_load, g_check, g_block), flag=E_.V_FL)
    stamp(a, 3)

def role_C2(a, cfg):
    L4 = a.label("c4"); Lnp = a.label("npb"); Lng = a.label("ng")
    a(f"s_sub_u32 s79, s{S_ROLE}, 128\ns_lshr_b32 s{S_T3}, s79, 3\ns_and_b32 s{S_T4}, s79, 7\ns_cmp_ge_u32 s{S_T4}, 5\ns_cbranch_scc1 {L4}")
    dbg_add(a, DBG_INIT)
    role_T5(a, cfg)
    a(f"s_branch L_exit\n{L4}:")
    a(f"s_mul_i32 s{S_T3}, s{S_T3}, 3\ns_add_u32 s79, s{S_T3}, s{S_T4}\ns_sub_u32 s79, s79, 5")
    dbg_add(a, DBG_INIT)
    a(f"s_cmp_ge_u32 s79, 8\ns_cbranch_scc1 {Lng}\ns_mov_b32 s{S_T3}, s79")
    gate(a)
    dbg_add(a, DBG_GATE)
    a(f"{Lng}:")
    a(f"s_mov_b32 s{S_T3}, s79")
    role_T4(a, cfg)
```

```python
S=2048; D=640; H=32; E=192; M=8; SEG=32; NSEG=64
MB = 1 << 20
F_T1   = 0x0000
F_E2   = 0x4000
F_CH   = 0x8000
F_T5   = 0xC000
F_PAR  = 0x20000
F_T5T  = 0xD000
F_O    = 0x10000
CTRL_BYTES = 0x20000
ABUF   = 1*MB
ABUF_BYTES = 96*2048
R_MEM  = 2*MB
R_B0   = 4*MB
R_B1   = 6*MB
KX = 16*MB; VX = 48*MB; QX = 80*MB; OX = 112*MB
KM = 144*MB; VM = 152*MB
QB = 160*MB; KB = 164*MB; VB = 168*MB; OB = 172*MB
GT = 176*MB
YB = 180*MB
PART = 192*MB
PART2 = 224*MB
WS_BYTES = 256*MB
NMAIN = 62
DBG_INIT = 8; DBG_T2 = 40; DBG_T3 = 9; DBG_ERR = 41; DBG_GATE = 42; DBG_Q = 11
def dbg_xcd(x): return (x & 1)*32 + (x >> 1)
KNAME = "gated_mix__memory_aug_recurrent_mem_tr__mha_block__prompt_kernel"
```

```python
from gen_b import *
def build(cfg):
    CFG.clear(); CFG.update(cfg)
    a = Asm()
    prologue(a, cfg)
    a("L_g1:")
    if cfg.get("solo"): a("s_branch L_exit")
    role_T1(a, cfg)
    a("s_branch L_exit" if cfg.get("t1only") else "s_branch L_t3")
    a("L_gb:")
    if cfg.get("solo"): a("s_branch L_exit")
    if cfg.get("t1only"): dbg_add(a, DBG_INIT); a("s_branch L_exit")
    role_B(a, cfg)
    nb3 = cfg.get("nb3", 32)
    a(f"s_and_b32 s{S_T0}, s{S_ROLE}, 7\ns_cmp_ge_u32 s{S_T0}, {nb3 // 4}\ns_cbranch_scc1 L_exit")
    a("L_t3:")
    role_T3(a, cfg)
    stamp(a, 4)
    a(f"s_cmp_ge_u32 s{S_ROLE}, 96\ns_cbranch_scc1 L_exit\ns_cmp_ge_u32 s{S_ROLE}, 40\ns_cbranch_scc1 L_tails\ns_mov_b32 s{S_T3}, s{S_ROLE}")
    role_T3b(a, cfg)
    a(f"s_branch L_exit\nL_tails:\ns_cmp_ge_u32 s{S_ROLE}, 80\ns_cbranch_scc1 L_t4t\ns_sub_u32 s{S_T3}, s{S_ROLE}, 40")
    role_T5T(a, cfg)
    a(f"s_branch L_exit\nL_t4t:\ns_sub_u32 s{S_T3}, s{S_ROLE}, 80")
    t4_tail_entry(a)
    a("L_gc:")
    if cfg.get("solo"): a("s_branch L_exit")
    if cfg.get("t1only"): dbg_add(a, DBG_INIT); a("s_branch L_exit")
    role_C2(a, cfg)
    a("s_branch L_exit")
    a("L_chain:")
    if cfg.get("solo"): a(f"s_cmp_ge_u32 s{S_ROLE}, {cfg['solo']}\ns_cbranch_scc1 L_exit")
    if cfg.get("t1only"): a("s_branch L_exit")
    role_chain(a, cfg)
    a("L_exit:\ns_endpgm")
    if cfg.get("solo"):
        a.L = [("s_nop 0" if (l.startswith("s_cbranch_vccnz L_cp") or l.startswith("s_cbranch_vccnz L_apr") or l.startswith("s_cbranch_vccnz L_vpr") or l.startswith("s_cbranch_vccnz L_bp")) else l) for l in a.L]
    if cfg.get("solo"):
        a.L = [(l.replace("s_cbranch_vccz", "s_branch") if (l.startswith("s_cbranch_vccz L_cpk") or l.startswith("s_cbranch_vccz L_bpx")) else l) for l in a.L]
    body = a.finish(cfg.get("verbose", False))
    hdr = open("gated_mix__memory_aug_recurrent_mem_tr__mha_block__prompt.s.ref").read().split("\n")
    top = [l for l in hdr if l.startswith(";") and "@launch" not in l and "Override" not in l and "grid=ceil" not in l]
    txt = "\n".join(top) + "\n; @launch grid=(256,1,1) block=(256,1,1) lds=163840\n"
    txt += f'.amdgcn_target "amdgcn-amd-amdhsa--gfx950"\n.text\n.globl {KNAME}\n.p2align 8\n.type {KNAME},@function\n{KNAME}:\n'
    txt += body
    txt += f'''.section .rodata,"a"
.p2align 6
.amdhsa_kernel {KNAME}
  .amdhsa_next_free_vgpr 512
  .amdhsa_next_free_sgpr 102
  .amdhsa_accum_offset 256
  .amdhsa_group_segment_fixed_size 0
  .amdhsa_kernarg_size 112
  .amdhsa_user_sgpr_count 2
  .amdhsa_user_sgpr_kernarg_segment_ptr 1
  .amdhsa_system_sgpr_workgroup_id_x 1
.end_amdhsa_kernel
'''
    return txt
if __name__ == "__main__":
    out = sys.argv[1] if len(sys.argv) > 1 else "k.s"
    open(out, "w").write(build(dict({"verbose": "-v" in sys.argv, "prof": "-p" in sys.argv}, **{k: eval(v) for k, v in (x.split("=", 1) for x in sys.argv[2:] if "=" in x)})))
```
